```python
import torch

def _softmax(x, axis=-1):
    return torch.softmax(x, dim=axis)

def _gelu(x):
    return torch.nn.functional.gelu(x, approximate='tanh')

def _silu(x):
    return torch.nn.functional.silu(x)

def _sigmoid(x):
    return torch.sigmoid(x)

def _layernorm(x, axis=-1, eps=1e-05):
    m = x.mean(dim=axis, keepdim=True)
    v = x.var(dim=axis, keepdim=True, unbiased=False)
    return (x - m) / torch.sqrt(v + eps)

def _scatter_add(tgt, idx, src, axis=0):
    return tgt.clone().index_add_(axis, idx, src)

def _segment_sum(src, seg, n):
    out = torch.zeros((n,) + src.shape[1:], dtype=src.dtype)
    return out.index_add_(0, seg, src)

def _pad(x, pw):
    flat = tuple((v for pair in reversed(pw) for v in pair))
    return torch.nn.functional.pad(x, flat)
kernel_name = 'gated_mix__memory_aug_recurrent_mem_tr__sliding_block__prompt'

def setup_inputs():

    _w = lambda a: (lambda t: t.to(torch.bfloat16) if t.is_floating_point() else t)(torch.as_tensor(a))

    def _A_setup():
        B, S, Dm = (1, 2048, 512)
        H, Dh = (32, 128)
        M, seg = (8, 32)
        seg = min(seg, S)
        S = S // seg * seg
        return {'x': _w((lambda *s: torch.randn(*s, dtype=torch.bfloat16) * 0.05)(B, S, Dm)), 'mem0': _w((lambda *s: torch.randn(*s, dtype=torch.bfloat16) * 1.6)(B, M, Dm)), 'Wq': _w((lambda *s: torch.randn(*s, dtype=torch.bfloat16) * 0.8)(Dm, H, Dh) * Dm ** (-0.5)), 'Wk': _w((lambda *s: torch.randn(*s, dtype=torch.bfloat16) * 0.8)(Dm, H, Dh) * Dm ** (-0.5)), 'Wv': _w((lambda *s: torch.randn(*s, dtype=torch.bfloat16) * 1.6)(Dm, H, Dh) * Dm ** (-0.5)), 'Wo': _w((lambda *s: torch.randn(*s, dtype=torch.bfloat16) * 1.6)(H, Dh, Dm) * (H * Dh) ** (-0.5)), 'seg_len': seg}
    _A_in = _A_setup()

    def _B_setup():
        B, S, D = (1, 2048, 512)
        return {'x': _w((lambda *s: torch.randn(*s, dtype=torch.bfloat16) * 0.05)(B, S, D)), 'wqkv': _w((lambda *s: torch.randn(*s, dtype=torch.bfloat16) * 1.6)(D, 3 * D)), 'wo': _w((lambda *s: torch.randn(*s, dtype=torch.bfloat16) * 0.05)(D, D))}
    _B_in = _B_setup()
    return {'A_x': _A_in['x'], 'A_mem0': _A_in['mem0'], 'A_Wq': _A_in['Wq'], 'A_Wk': _A_in['Wk'], 'A_Wv': _A_in['Wv'], 'A_Wo': _A_in['Wo'], 'A_seg_len': _A_in['seg_len'], 'B_x': _B_in['x'], 'B_wqkv': _B_in['wqkv'], 'B_wo': _B_in['wo'], 'gate_w': _w((lambda *s: torch.randn(*s, dtype=torch.bfloat16) * 0.05)(512) * 16.0)}

def reference(A_x, A_mem0, A_Wq, A_Wk, A_Wv, A_Wo, A_seg_len, B_x, B_wqkv, B_wo, gate_w):

    def _A_ref(x, mem0, Wq, Wk, Wv, Wo, seg_len):
        B, S, Dm = x.shape
        H, Dh = (Wq.shape[1], Wq.shape[2])
        M = mem0.shape[1]
        scale = Dh ** (-0.5)
        n_seg = S // seg_len
        L = M + seg_len
        idx = torch.arange(L)
        mask = (idx[:, None] < M) | (idx[:, None] >= idx[None, :])
        mem = mem0
        outs = []
        for s in range(n_seg):
            xs = x[:, s * seg_len:(s + 1) * seg_len, :].clone()
            h = torch.concatenate([mem, xs], axis=1)
            q = torch.einsum('btd,dhe->bhte', h, Wq)
            k = torch.einsum('btd,dhe->bhte', h, Wk)
            v = torch.einsum('btd,dhe->bhte', h, Wv)
            scores = torch.einsum('bhqe,bhke->bhqk', q, k) * scale
            scores = torch.where(mask[None, None], scores, -1000000000.0)
            p = _softmax(scores, axis=-1)
            o = torch.einsum('bhqk,bhke->bhqe', p, v)
            o = torch.einsum('bhte,hed->btd', o, Wo)
            mem = o[:, :M, :].clone()
            outs.append(o[:, M:, :])
        return torch.concatenate(outs, axis=1)

    def _B_ref(x, wqkv, wo):
        B, S, D = x.shape
        H = 32
        Dh = D // H
        W = 256
        qkv = (lambda x, *d: x.permute(*d))((x @ wqkv).reshape(B, S, 3, H, Dh), 2, 0, 3, 1, 4)
        q, k, v = (qkv[0], qkv[1], qkv[2])
        scores = torch.einsum('bhqd,bhkd->bhqk', q, k) * Dh ** (-0.5)
        idx = torch.arange(S)
        mask = (idx[:, None] - idx[None, :] >= 0) & (idx[:, None] - idx[None, :] < W)
        scores = torch.where(mask[None, None], scores, -1000000000.0)
        p = _softmax(scores, axis=-1)
        o = torch.einsum('bhqk,bhkd->bhqd', p, v)
        return (lambda x, *d: x.permute(*d))(o, 0, 2, 1, 3).reshape(B, S, D) @ wo
    x = A_x
    g = _sigmoid((x * gate_w).sum(-1, keepdims=True))
    a = _A_ref(x, A_mem0, A_Wq, A_Wk, A_Wv, A_Wo, A_seg_len)
    b = _B_ref(x, B_wqkv, B_wo)
    return g * a + (1 - g) * b
```

```python
import re

_REG = re.compile(r'^(-|abs\(|\|)?([vas])(\d+|\[(\d+):(\d+)\])\)?\|?$')

def regs_of(op):
    op = op.strip()
    if op in ('vcc',): return {('s', 106), ('s', 107)}
    if op in ('vcc_lo',): return {('s', 106)}
    if op in ('vcc_hi',): return {('s', 107)}
    if op in ('exec',): return {('s', 126), ('s', 127)}
    if op in ('exec_lo',): return {('s', 126)}
    if op in ('exec_hi',): return {('s', 127)}
    if op == 'm0': return {('s', 124)}
    m = _REG.match(op)
    if not m: return set()
    k = m.group(2)
    if m.group(4) is not None:
        return {(k, i) for i in range(int(m.group(4)), int(m.group(5)) + 1)}
    return {(k, int(m.group(3)))}

TRANS = ('v_exp_f32', 'v_log_f32', 'v_rcp_f32', 'v_rsq_f32', 'v_sqrt_f32', 'v_sin_f32', 'v_cos_f32')

class Ins:
    __slots__ = ('text', 'op', 'ops', 'mods', 'kind', 'wr', 'rd', 'passes', 'srcC', 'srcAB', 'dfirst', 'states', 'storedata', 'dpp', 'islds')
    def __init__(self, text):
        self.text = text
        t = text.split(';')[0].strip()
        parts = t.split(None, 1)
        self.op = op = parts[0]
        rest = parts[1] if len(parts) > 1 else ''
        ops = []; cur = ''; depth = 0
        for ch in rest:
            if ch in '[(': depth += 1
            if ch in '])': depth -= 1
            if ch == ',' and depth == 0: ops.append(cur.strip()); cur = ''
            else: cur += ch
        if cur.strip(): ops.append(cur.strip())
        mods = ''
        if ops:
            last = ops[-1].split(None, 1)
            if len(last) > 1 and not ops[-1].startswith('hwreg') and not op.startswith('s_waitcnt'):
                ops[-1] = last[0]; mods = last[1]
        self.ops = ops; self.mods = mods
        self.wr = set(); self.rd = set(); self.passes = 0; self.srcC = set(); self.srcAB = set(); self.dfirst = None
        self.states = 1; self.storedata = set(); self.dpp = ('_dpp' in op) or ('row_' in mods) or ('quad_perm' in mods); self.islds = False
        R = [regs_of(o) for o in ops]
        if op.startswith('v_mfma') or op.startswith('v_smfmac'):
            self.kind = 'mfma'
            self.passes = 8 if '32x32' in op else 4
            self.wr = set(R[0]); self.dfirst = ops[0]
            if op.startswith('v_mfma'):
                self.srcAB = R[1] | R[2]; self.srcC = R[3]
            else:
                self.srcAB = R[1] | R[2] | R[3]; self.srcC = set(R[0])
            self.rd = self.srcAB | self.srcC
        elif op.startswith('v_'):
            self.kind = 'valu'
            if op.startswith('v_cmp'):
                self.wr = set(R[0]); self.rd = set().union(*R[1:])
            elif op.startswith('v_permlane') and 'swap' in op:
                self.wr = R[0] | R[1]; self.rd = R[0] | R[1]
            elif op in ('v_add_co_u32', 'v_sub_co_u32', 'v_addc_co_u32'):
                self.wr = R[0] | R[1]; self.rd = set().union(*R[2:])
            elif op == 'v_nop':
                pass
            else:
                self.wr = set(R[0]); self.rd = set().union(*R[1:]) if len(R) > 1 else set()
                if op.startswith('v_fmac') or op.startswith('v_dot2c') or op.startswith('v_writelane') or self.dpp:
                    self.rd |= R[0]
                if op.startswith('v_cndmask') and len(ops) == 3: self.rd |= regs_of('vcc')
        elif op.startswith('ds_'):
            self.kind = 'ds'
            if op.startswith('ds_read') or op.startswith('ds_bpermute') or op.startswith('ds_permute') or op.startswith('ds_swizzle'):
                self.wr = set(R[0]); self.rd = set().union(*R[1:])
            else:
                self.rd = set().union(*R)
        elif op.startswith('buffer_') or op.startswith('global_'):
            self.kind = 'vmem'
            lds = ' lds' in (' ' + mods) or '_lds_' in op
            self.islds = lds
            if op in ('buffer_inv', 'buffer_wbl2'):
                pass
            elif lds:
                self.rd = set().union(*R) | regs_of('m0')
            elif op.startswith('buffer_load'):
                self.wr = set(R[0]); self.rd = set().union(*R[1:])
                if 'd16' in op: self.rd |= R[0]
            elif op.startswith('buffer_store'):
                self.rd = set().union(*R)
                if 'x4' in op or 'x3' in op: self.storedata = set(R[0])
            elif op.startswith('buffer_atomic'):
                self.rd = set().union(*R)
                if 'sc0' in mods: self.wr = set(R[0])
            elif op.startswith('global_load'):
                self.wr = set(R[0]); self.rd = set().union(*R[1:])
            elif op.startswith('global_store'):
                self.rd = set().union(*R)
                if 'x4' in op or 'x3' in op: self.storedata = set(R[1])
            elif op.startswith('global_atomic'):
                if 'sc0' in mods: self.wr = set(R[0]); self.rd = set().union(*R[1:])
                else: self.rd = set().union(*R)
            else:
                raise ValueError('unknown vmem ' + text)
        elif op.startswith('s_'):
            self.kind = 'salu'
            if op == 's_nop':
                self.states = int(ops[0], 0) + 1
            elif op.startswith('s_cmp') or op.startswith('s_cbranch') or op.startswith('s_bitcmp') or op in ('s_branch', 's_barrier', 's_waitcnt', 's_endpgm', 's_sleep', 's_setprio', 's_setpc_b64'):
                self.rd = set().union(*R) if R else set()
            else:
                self.wr = set(R[0]) if R else set(); self.rd = set().union(*R[1:]) if len(R) > 1 else set()
                if 'saveexec' in op: self.wr |= regs_of('exec')
        else:
            raise ValueError('unknown instruction ' + text)

def need(p, c):
    n = 0
    vec = lambda s: {r for r in s if r[0] != 's'}
    sca = lambda s: {r for r in s if r[0] == 's'}
    if p.kind == 'valu':
        pv = vec(p.wr); ps = sca(p.wr)
        if c.kind == 'mfma' and pv & c.rd: n = max(n, 2)
        if c.kind == 'vmem' and ps & c.rd: n = max(n, 5)
        if c.kind == 'valu':
            if ps & c.rd:
                n = max(n, 4 if (c.op.startswith('v_readlane') or c.op.startswith('v_writelane')) else 2)
            if pv & c.rd:
                if c.op.startswith('v_readfirstlane') or c.op.startswith('v_readlane'): n = max(n, 1)
                if c.op.startswith('v_permlane'): n = max(n, 2)
                if c.dpp: n = max(n, 2)
                if p.op in TRANS and c.op not in TRANS: n = max(n, 1)
                if p.op in TRANS: n = max(n, 1)
        if c.kind in ('ds', 'vmem') and p.op in TRANS and pv & c.rd: n = max(n, 1)
        if c.kind == 'salu' and ps & c.rd: n = max(n, 1)
    elif p.kind == 'mfma':
        big = 12 if p.passes == 8 else 8
        if c.kind == 'mfma':
            if p.wr & c.srcAB: n = max(n, big)
            if p.wr & c.srcC:
                same = (p.wr == c.srcC and p.passes == c.passes)
                if not same: n = max(n, big - 2)
            elif p.wr & c.wr:
                if not (p.wr == c.wr and p.passes == c.passes): n = max(n, big)
        elif c.kind in ('valu', 'ds', 'vmem'):
            if p.wr & (c.rd | c.wr): n = max(n, big)
            if c.kind == 'valu' and (p.srcC & c.wr): n = max(n, 7 if p.passes == 8 else 3)
    elif p.kind == 'salu':
        if ('s', 124) in p.wr and c.kind == 'vmem' and c.islds: n = max(n, 1)
    if p.kind == 'vmem' and p.storedata and (p.storedata & c.wr):
        n = max(n, 2 if c.kind in ('valu', 'mfma') else 1)
    return n

class Asm:
    def __init__(self):
        self.items = []
        self.uid = 0
        self.nops_added = 0
    def __call__(self, text):
        for line in text.split('\n'):
            s = line.strip()
            if not s: continue
            if s.startswith(';') or s.startswith('.') or s.endswith(':'):
                self.items.append(s)
            else:
                self.items.append(Ins(s))
    def label(self, base='L'):
        self.uid += 1
        return f'{base}_{self.uid}'
    def render(self):
        items = self.items
        out = []
        hist = []
        W = 16
        lin = [it for it in items]
        br_windows = {}
        cur = []
        for it in lin:
            if isinstance(it, Ins):
                cur.append(it)
                if it.op.startswith('s_cbranch') or it.op == 's_branch':
                    br_windows.setdefault(it.ops[0], []).append(cur[-W:])
        alt = []
        for it in lin:
            if not isinstance(it, Ins):
                out.append(it)
                if it.endswith(':') and not it.startswith(';'):
                    lab = it[:-1]
                    for w in br_windows.get(lab, []): alt.append(list(w))
                continue
            req = 0
            for h in [hist] + alt:
                dist = 0
                for p in reversed(h[-W:]):
                    nd = need(p, it)
                    if nd > dist: req = max(req, nd - dist)
                    dist += p.states
                    if dist >= 20: break
            while req > 0:
                k = min(req, 16)
                nop = Ins(f's_nop {k-1}')
                out.append('    ' + nop.text + ' ; auto'); hist.append(nop)
                for a in alt: a.append(nop)
                self.nops_added += 1
                req -= k
            out.append('    ' + it.text); hist.append(it)
            for a in alt: a.append(it)
            alt = [a for a in alt if len(a) < 3 * W]
            if it.op in ('s_branch', 's_endpgm', 's_setpc_b64'):
                hist = []; alt = []
        return '\n'.join(out) + '\n'

    def lane_affine(self, dst, f, lane, tmp, nbits=6):
        f0 = f(0)
        c = [(f(1 << b) - f0) for b in range(nbits)]
        for l in range(1 << nbits):
            assert f(l) == f0 + sum(c[b] for b in range(nbits) if l >> b & 1), f'not affine at lane {l}'
        fields = []
        b = 0
        while b < nbits:
            if c[b] == 0: b += 1; continue
            w = 1
            while b + w < nbits and c[b + w] == c[b] << w: w += 1
            fields.append((b, w, c[b])); b += w
        first = True
        if not fields:
            self(f'v_mov_b32 {dst}, {f0 & 0xffffffff}'); return
        for (b, w, cc) in fields:
            assert 0 < cc < (1 << 24), cc
            t = dst if first else tmp
            self(f'v_bfe_u32 {t}, {lane}, {b}, {w}')
            if cc != 1: self(f'v_mul_u32_u24 {t}, {cc}, {t}')
            if not first: self(f'v_add_u32 {dst}, {dst}, {tmp}')
            first = False
        if f0: self(f'v_add_u32 {dst}, {f0 & 0xffffffff}, {dst}')

def vr(base, n=1, k='v'):
    return f'{k}{base}' if n == 1 else f'{k}[{base}:{base+n-1}]'
def ar(base, n=1): return vr(base, n, 'a')
def sr(base, n=1): return vr(base, n, 's')
```

```python
WS_FLAGS = 0x0
WS_RM    = 0x10000
WS_RP    = 0x80000
WS_G     = 0x100000
WS_OB    = 0x200000
WS_KM    = 0x400000
WS_VM    = 0x800000
WS_KX    = 0x1000000
WS_VX    = 0x2000000
WS_PART  = 0x4000000
WS_TS    = 0x9000000
WS_BYTES = 268435456
def FL_KV(g, h): return WS_FLAGS + (g * 32 + h) * 128
def FL_R(h): return WS_FLAGS + (96 + h) * 128
def FL_B(g, h): return WS_FLAGS + (128 + g * 32 + h) * 128
def FL_QA(g): return WS_FLAGS + (224 + g) * 128
DBG_TICKET = 0
DBG_OVER = 8
DBG_INIT = 9
DBG_RINIT = 10
DBG_ERR = 16
SENT = 0x7F817F81
```

```python
from asmlib import *
from layout import *
import gen as G
from gen import SRD, S_X, S_MEM0, S_WQ, S_WK, S_WV, S_WO, S_BQKV, S_BWO, S_GATE, S_OUT, S_DBG, S_WS, sWAVE, sHEAD, sGRP, sSPIN, vLANE
import struct, math
def f32(x): return '0x%08x' % struct.unpack('<I', struct.pack('<f', x))[0]

class LQ:
    def __init__(self, a): self.a = a; self.q = []
    def issue(self, text, tag): self.a(text); self.q.append(tag)
    def wait(self, tag):
        if tag not in self.q: return
        i = len(self.q) - 1 - self.q[::-1].index(tag)
        n = len(self.q) - 1 - i
        self.a(f's_waitcnt lgkmcnt({min(n, 15)})')
        self.q = self.q[i + 1:] if n <= 15 else self.q[len(self.q) - 15:]
    def drain(self): self.a('s_waitcnt lgkmcnt(0)'); self.q = []

def polled_loads(a, n, dst, voff, soffs, vtmp, vsent, on_ok, code, tag):
    def ld(i):
        s, imm = soffs[i]
        a(f'buffer_load_dwordx4 {vr(dst + 4 * i, 4)}, {voff}, {SRD(S_WS)}, {s} offen offset:{imm} sc1')
    a(f's_mov_b32 {sSPIN}, 0')
    for i in range(n): ld(i)
    for i in range(n):
        d = dst + 4 * i
        a(f'L_{tag}_CHK{i}:')
        a(f's_waitcnt vmcnt({n - 1 - i})')
        a(f'v_fma_f32 {vtmp}, v{d}, v{d+1}, v{d+2}')
        a(f'v_cmp_u_f32 vcc, {vtmp}, v{d+3}')
        a(f's_cbranch_vccnz L_{tag}_RETRY{i}')
        a(f'L_{tag}_OK{i}:')
        on_ok(i)
    def outline():
        for i in range(n):
            d = dst + 4 * i
            a(f'L_{tag}_RETRY{i}:')
            a(f'v_cmp_eq_u32 s[96:97], v{d}, {vsent}')
            a(f'v_cmp_eq_u32 s[98:99], v{d+1}, {vsent}')
            a(f'v_cmp_eq_u32 s[100:101], v{d+2}, {vsent}')
            a(f'v_cmp_eq_u32 vcc, v{d+3}, {vsent}')
            a(f's_or_b64 s[96:97], s[96:97], s[98:99]')
            a(f's_or_b64 vcc, vcc, s[100:101]')
            a(f's_or_b64 vcc, vcc, s[96:97]')
            a(f's_cbranch_scc0 L_{tag}_OK{i}')
            for k in range(i, n): ld(k)
            G.spin_check(a, code)
            a(f's_branch L_{tag}_CHK{i}')
    return outline

def role_r(a, cfg):
    NKV = cfg.roles.count('KV')
    L_MEM = 131072; L_QK = L_MEM + 8192; L_VM = L_QK + 4096; L_KX = L_VM + 4096; L_VX = L_KX + 8192
    assert L_VX + 8192 == 163840
    sRING, sT0, sT1, sCOL, sSTEP, sRPW, sRPR, sRMW, sRMR, sRMZ, sFAST, sT2, sT3, sKVF, sOC, sRPR2 = [f's{i}' for i in range(60, 76)]
    sMASK8 = 's[76:77]'
    sQS = 's78'
    sKXO, sKMO, sVMO, sFLR, sKVOK = 's79', 's80', 's81', 's82', 's83'
    vL16, vWS, vMEMA, vQKW, vQKR, vKXA, vVXA, vOW, vVMW, vPST, vRMS, vIDX, vKMS, vT, vT2, vWARM = [f'v{i}' for i in range(1, 17)]
    SEL = 16 + 0; SEL = 17
    SEL = 18; SENTQ = 22
    vFLG = 'v17'
    MEMOP = 26 + 0
    MEMOP = 26; STG = 58; QKA = 90; VA = 106; QOP = 114
    SEL = 16; SENTQ = 20; MEMOP = 24; STG = 56; QKA = 88; VA = 104; QOP = 112; WRES = 128
    vL16, vWS, vMEMA, vQKW, vQKR, vKXA, vVXA, vOW, vVMW, vPST, vRMS, vIDX, vKMS, vT, vT2 = [f'v{i}' for i in range(1, 16)]
    vSENT = f'v{SENTQ}'
    KOP = QKA; KXOP = STG; SREG = MEMOP; OUT = MEMOP; RED = MEMOP
    VXOP = QOP; OOP = QOP + 8
    PM = STG; PX = STG + 2; OA = STG + 8; EX = STG + 16
    T0 = STG + 28

    a('L_ROLE_R:')
    a(f'v_lshlrev_b32 {vL16}, 4, {vLANE}')
    for i in range(4): a(f'v_mov_b32 v{SENTQ + i}, 0x{SENT:08x}')
    a(f's_mov_b32 s76, 0x00ff00ff'); a(f's_mov_b32 s77, 0x00ff00ff')
    a(f's_lshl_b32 {sT0}, {sHEAD}, 13')
    a(f's_lshl_b32 s3, {sWAVE}, 11')
    a(f's_add_u32 {sT0}, {sT0}, s3')
    a(f's_add_u32 {sT0}, {sT0}, {WS_RP}')
    a(f's_add_u32 {sT1}, {sT0}, 262144')
    for s in (sT0, sT1):
        for o in (0, 1024):
            a(f'buffer_store_dwordx4 {vr(SENTQ, 4)}, {vL16}, {SRD(S_WS)}, {s} offen offset:{o} sc1')
    a.lane_affine(vRMS, lambda l: (8 * (l >> 5) + (l & 7)) * 16 + ((l >> 4) & 1) * 8, vLANE, vT)
    a(f's_and_b32 s3, {sHEAD}, 7'); a(f's_lshl_b32 {sT0}, s3, 10')
    a(f's_lshr_b32 s3, {sHEAD}, 3'); a(f's_lshl_b32 s3, s3, 8')
    a(f's_add_u32 {sT0}, {sT0}, s3')
    a(f'v_add_u32 {vRMS}, {sT0}, {vRMS}')
    a(f's_cmp_lg_u32 {sWAVE}, 0')
    a(f's_cbranch_scc1 L_R_NOINIT')
    a.lane_affine(vT2, lambda l: (l & 7) * 1024 + (l >> 4) * 8, vLANE, vT)
    a(f's_and_b32 s3, {sHEAD}, 7'); a(f's_lshl_b32 {sT0}, s3, 5')
    a(f's_lshr_b32 s3, {sHEAD}, 3'); a(f's_lshl_b32 s3, s3, 8')
    a(f's_add_u32 {sT0}, {sT0}, s3')
    a(f'buffer_load_dwordx2 v[24:25], {vT2}, {SRD(S_MEM0)}, {sT0} offen')
    a(f's_mov_b64 exec, {sMASK8}')
    a(f's_mov_b32 {sT0}, {WS_RM + 8192}'); a(f's_mov_b32 {sT1}, {WS_RM + 16384}'); a(f's_mov_b32 {sT2}, {WS_RM}')
    a(f'buffer_store_dwordx2 {vr(SENTQ, 2)}, {vRMS}, {SRD(S_WS)}, {sT0} offen sc1')
    a(f'buffer_store_dwordx2 {vr(SENTQ, 2)}, {vRMS}, {SRD(S_WS)}, {sT1} offen sc1')
    a('s_waitcnt vmcnt(2)')
    a(f'buffer_store_dwordx2 v[24:25], {vRMS}, {SRD(S_WS)}, {sT2} offen sc1')
    a(f's_mov_b64 exec, -1')
    a('L_R_NOINIT:')
    vWOFF, vTR, vWOFF2, vTR2 = 'v24', 'v25', 'v26', 'v27'
    a('s_nop 4')
    a(f's_lshl_b32 {sRING}, {sWAVE}, 15')
    a.lane_affine(vWOFF, lambda l: (l >> 2) * 8192 + (l & 3) * 16, vLANE, vT)
    def trq(l):
        gB = l >> 4; r = (l & 15) >> 2; cc = l & 3
        return (16 * (gB >> 1) + 4 * (gB & 1) + 8 * (r >> 1) + (r & 1)) * 64 + cc * 8
    a.lane_affine(vTR, trq, vLANE, vT)
    a(f'v_add_u32 {vTR}, {sRING}, {vTR}')
    a.lane_affine(vWOFF2, lambda l: ((l >> 5) * 4 + ((l >> 4) & 1)) * 1024 + (l & 15) * 16, vLANE, vT)
    def tro(l):
        gB = l >> 4; r = (l & 15) >> 2; cc = l & 3; p = r >> 1; b = r & 1
        return (8 * p + 4 * (gB & 1) + 2 * (gB >> 1) + b) * 256 + cc * 8
    a.lane_affine(vTR2, tro, vLANE, vT)
    a(f'v_add_u32 {vTR2}, {sRING}, {vTR2}')
    a(f'v_add_u32 {vWS}, {sRING}, {vL16}')
    a(f's_lshl_b32 {sCOL}, {sHEAD}, 8')
    a(f's_lshl_b32 s3, {sWAVE}, 6')
    a(f's_add_u32 {sCOL}, {sCOL}, s3')
    a(f's_lshl_b32 {sOC}, {sHEAD}, 17')
    a(f's_lshl_b32 s3, {sWAVE}, 8')
    a(f's_add_u32 {sOC}, {sOC}, s3')
    def qkv_block(srd, kc, dest_of_tile, post=None):
        reads = []
        for t in range(2):
            for jj in (0, 2, 4, 6):
                off = (32 * (jj >> 2) + 2 * ((jj >> 1) & 1)) * 64 + t * 32
                k, base = dest_of_tile(t)
                reads.append((vr(base + jj, 2, k), vTR, off))
        return dict(srd=SRD(srd), voff=vWOFF, soffs=[(sCOL, (128 * i + 16 * kc) * 8192) for i in range(4)], reads=reads, post=post)
    WV = lambda t, kc: (t * 8 + kc) * 8
    WO = lambda t, kc: 128 + (t * 2 + kc) * 8
    WQK = lambda M, t, kc2: WRES + ((M * 4 + kc2) * 2 + t) * 8
    blocks = []
    def sig_init(slot):
        a('s_barrier')
        a(f's_cmp_lg_u32 {sWAVE}, 0')
        a(f's_cbranch_scc1 L_R_NOSIG')
        a(f's_mov_b64 exec, 1')
        a(f'v_mov_b32 {vT}, {DBG_RINIT * 4}')
        a(f'v_mov_b32 {vT2}, 1')
        a(f'buffer_atomic_add {vT2}, {vT}, {SRD(S_DBG)}, 0 offen')
        a(f's_mov_b64 exec, -1')
        a('L_R_NOSIG:')
    for kc in range(8):
        blocks.append(qkv_block(S_WV, kc, lambda t, kc=kc: ('a', WV(t, kc)), post=sig_init if kc == 0 else None))
    for kc in range(2):
        for jj in (0, 2, 4, 6):
            reads = [(ar(WO(t, kc) + jj, 2), vTR2, t * 32) for t in range(8)]
            rowbase = 64 * kc + 8 * (jj >> 2) + 2 * ((jj >> 1) & 1)
            blocks.append(dict(srd=SRD(S_WO), voff=vWOFF2, soffs=[(sOC, (rowbase + 32 * (i >> 1) + 16 * (i & 1)) * 1024) for i in range(4)], reads=reads))
    for M, srd in enumerate((S_WQ, S_WK)):
        for kc2 in range(4):
            blocks.append(qkv_block(srd, 2 * kc2, lambda t, M=M, kc2=kc2: ('v', WQK(M, t, kc2))))
    CONV = 32
    def conv_post(slot):
        for q in range(4):
            a(f'ds_write_b128 {vWS}, {vr(CONV + 4 * q, 4)} offset:{slot * 4096 + q * 1024}')
        a('s_waitcnt lgkmcnt(0)')
    for M, srd in enumerate((S_WQ, S_WK)):
        for kc2 in range(4):
            blocks.append(qkv_block(srd, 2 * kc2 + 1, lambda t: ('v', CONV + 8 * t), post=conv_post))
    assert len(blocks) == 32
    G.load_weights(a, blocks, sRING, 8, None, sT1)
    G.stamp(a, cfg, 1, vT, vT2)
    a(f'v_add_u32 {vMEMA}, {L_MEM}, {vL16}')
    a.lane_affine(vQKW, lambda l: L_QK + (16 * (l >> 5) + (l & 15)) * 16 + ((l >> 4) & 1) * 8, vLANE, vT)
    a(f's_lshl_b32 s3, {sWAVE}, 9'); a(f'v_add_u32 {vQKW}, s3, {vQKW}')
    a.lane_affine(vQKR, lambda l: L_QK + (16 * (l >> 5) + 4 * ((l >> 4) & 1) + ((l & 15) >> 2)) * 16 + (l & 1) * 8, vLANE, vT)
    a.lane_affine(vKXA, lambda l: L_KX + (l >> 4) * 512 + (16 * ((l >> 3) & 1) + (l & 7)) * 16, vLANE, vT)
    a.lane_affine(vVXA, lambda l: L_VX + (l >> 4) * 512 + (l & 15) * 16, vLANE, vT)
    a(f's_lshl_b32 s3, {sWAVE}, 11'); a(f'v_add_u32 {vVXA}, s3, {vVXA}')
    a.lane_affine(vOW, lambda l: L_MEM + (16 * (l >> 4) + (l & 7)) * 16, vLANE, vT)
    a(f's_lshr_b32 s3, {sWAVE}, 1'); a(f's_lshl_b32 s3, s3, 10'); a(f'v_add_u32 {vOW}, s3, {vOW}')
    a(f's_and_b32 s3, {sWAVE}, 1'); a(f's_lshl_b32 s3, s3, 7'); a(f'v_add_u32 {vOW}, s3, {vOW}')
    a.lane_affine(vVMW, lambda l: L_VM + ((l >> 4) & 1) * 512 + (l & 15) * 16 + (l >> 5) * 8, vLANE, vT)
    a(f's_lshl_b32 s3, {sWAVE}, 10'); a(f'v_add_u32 {vVMW}, s3, {vVMW}')
    a.lane_affine(vPST, lambda l: (l >> 5) * 8192 + (l & 15) * 16 + ((l >> 4) & 1) * 8, vLANE, vT)
    a.lane_affine(vKMS, lambda l: (l >> 4) * 128 + (l & 7) * 16, vLANE, vT)
    a(f'v_mov_b32 {vIDX}, 0xeeee')
    a(f'v_mov_b32 {vT}, 0x4444')
    a(f'v_cndmask_b32 {vIDX}, {vIDX}, {vT}, {sMASK8}')
    a(f'v_and_b32 {vT}, 1, {vLANE}')
    a(f'v_lshlrev_b32 {vT}, 4, {vT}')
    a(f'v_mov_b32 {vT2}, 0x3f80')
    a(f'v_lshlrev_b32 {vT2}, {vT}, {vT2}')
    a(f'v_bfe_u32 {vT}, {vLANE}, 1, 3')
    for i in range(4):
        a(f'v_cmp_eq_u32 vcc, {i}, {vT}')
        a(f'v_cndmask_b32 v{SEL + i}, 0, {vT2}, vcc')
    a(f's_mov_b32 {sQS}, {f32(128 ** -0.5 * math.log2(math.e))}')
    G.wait_init(a, vT, vT2)
    a(f'v_mov_b32 {vT2}, {DBG_RINIT * 4}')
    G.wait_ge(a, SRD(S_DBG), vT2, 0, 32, vT, 's3', 2)
    xr = cfg.roles.index('R')
    a(f'v_mov_b32 {vT2}, {(DBG_TICKET + xr) * 4}')
    a(f'buffer_load_dword {vT}, {vT2}, {SRD(S_DBG)}, 0 offen sc1')
    a('s_waitcnt vmcnt(0)')
    a(f'v_readfirstlane_b32 {sFAST}, {vT}')
    a(f's_mov_b32 {sSTEP}, 0')
    a(f's_lshl_b32 {sRPW}, {sWAVE}, 16'); a(f's_lshl_b32 s3, {sHEAD}, 8'); a(f's_add_u32 {sRPW}, {sRPW}, s3'); a(f's_add_u32 {sRPW}, {sRPW}, {WS_RP}')
    a(f's_lshl_b32 {sRPR}, {sHEAD}, 13'); a(f's_add_u32 {sRPR}, {sRPR}, {WS_RP}')
    a(f's_mov_b32 {sRMR}, {WS_RM}')
    a(f's_mov_b32 {sRMW}, {WS_RM + 8192}')
    a(f's_lshl_b32 {sKXO}, {sHEAD}, 13')
    a(f's_lshl_b32 {sKMO}, {sHEAD}, 11'); a(f's_add_u32 {sKMO}, {sKMO}, {WS_KM}')
    a(f's_lshl_b32 {sVMO}, {sHEAD}, 12'); a(f's_add_u32 {sVMO}, {sVMO}, {WS_VM}')
    a(f's_lshl_b32 {sFLR}, {sHEAD}, 7'); a(f's_add_u32 {sFLR}, {sFLR}, {FL_R(0)}')
    a(f's_lshl_b32 {sKVF}, {sHEAD}, 7'); a(f's_add_u32 {sKVF}, {sKVF}, {FL_KV(0, 0)}')
    G.stamp(a, cfg, 2, vT, vT2)
    if cfg.force_slow:
        a('s_branch L_R_SLOW_ENTRY')
    else:
        a(f's_cmp_lt_u32 {sFAST}, 32')
        a(f's_cbranch_scc1 L_R_SLOW_ENTRY')

    def kv_wait(seg_s, tag):
        if NKV == 2:
            a(f's_and_b32 {sT0}, {seg_s}, 1'); a(f's_lshr_b32 {sT1}, {seg_s}, 1')
        elif NKV == 1:
            a(f's_mov_b32 {sT0}, 0'); a(f's_mov_b32 {sT1}, {seg_s}')
        else:
            a(f's_mul_i32 {sT1}, {seg_s}, 43'); a(f's_lshr_b32 {sT1}, {sT1}, 7'); a(f's_mul_i32 {sT0}, {sT1}, 3'); a(f's_sub_u32 {sT0}, {seg_s}, {sT0}')
        a(f's_lshl_b32 {sT0}, {sT0}, 12'); a(f's_add_u32 {sT0}, {sT0}, {sKVF}')
        a(f's_add_u32 {sT1}, {sT1}, 1')
        a(f'v_mov_b32 {vT2}, 0')
        G.wait_ge(a, SRD(S_WS), vT2, sT0, sT1, vT, 's3', 3, sleep=1)
    def kv_dma():
        a(f's_add_u32 {sT0}, {sKXO}, {WS_KX}')
        a(f's_add_u32 {sT1}, {sKXO}, {WS_VX}')
        for (s, lb) in ((sT0, L_KX), (sT1, L_VX)):
            for h2 in range(2):
                a(f's_mov_b32 m0, {lb + h2 * 4096}')
                if h2: a(f's_add_u32 {s}, {s}, 4096')
                for i in range(4):
                    a(f'buffer_load_dwordx4 {vL16}, {SRD(S_WS)}, {s} offen offset:{i * 1024} sc1 lds')

    def loop(mode):
        SC = '' if mode == 'FAST' else ' sc1'
        P = f'R{mode}'
        outl = []
        lq = LQ(a)
        def prefill():
            for f in range(4):
                for hh in range(2):
                    lq.issue(f'ds_read_b128 {vr(STG + 8 * f + 4 * hh, 4)}, {vWS} offset:{f * 2048 + hh * 1024}', ('w', f))
        def zero_qkv():
            for i in range(24): a(f'v_mov_b32 v{QKA + i}, 0')
        a(f'L_{P}_ENTRY:' if mode == 'FAST' else 'L_R_SLOW_ENTRY:')
        prefill(); zero_qkv()
        a(f's_cmp_lg_u32 {sWAVE}, 3')
        a(f's_cbranch_scc1 L_{P}_GATHER')
        kv_wait(sSTEP, P + 'kv0')
        kv_dma()
        a('s_waitcnt vmcnt(0)')
        a(f's_branch L_{P}_B2')
        a(f'L_{P}_GATHER:')
        a(f's_cmp_eq_u32 {sWAVE}, 0')
        a(f's_cbranch_scc1 L_{P}_B2')
        a(f's_sub_u32 {sT0}, {sWAVE}, 1'); a(f's_lshl_b32 {sT0}, {sT0}, 12')
        a(f'v_add_u32 {vT2}, {sT0}, {vMEMA}')
        a(f's_add_u32 {sT0}, {sT0}, {sRMR}')
        outl.append(polled_loads(a, 4, MEMOP, vL16, [(sT0, i * 1024) for i in range(4)], vT, vSENT,
                                 lambda i: a(f'ds_write_b128 {vT2}, {vr(MEMOP + 4 * i, 4)} offset:{i * 1024}'), 4, P + 'G'))
        a(f'L_{P}_B2:')
        a('s_waitcnt lgkmcnt(0)'); lq.q = []
        a('s_barrier')
        if cfg.ts:
            a(f's_add_u32 s3, {sSTEP}, 8'); G.stamp(a, cfg, 's3', vT, vT2)
        for kc in range(8):
            lq.issue(f'ds_read_b128 {vr(MEMOP + 4 * kc, 4)}, {vMEMA} offset:{kc * 1024}', ('m', kc))
        def smf(d, kc, b): a(f'v_smfmac_f32_16x16x64_bf16 {vr(d, 4)}, {vr(MEMOP + 4 * kc, 4)}, {b}, {vIDX}')
        def finish(M):
            A0 = QKA + 8 * M; A1 = A0 + 4
            for r in range(4): a(f'v_permlane32_swap_b32 v{A0 + r}, v{A1 + r}')
            for r in range(4): a(f'v_add_f32 v{A0 + r}, v{A0 + r}, v{A1 + r}')
            if M == 0:
                for r in range(4): a(f'v_mul_f32 v{A0 + r}, {sQS}, v{A0 + r}')
            a(f'v_cvt_pk_bf16_f32 v{A1}, v{A0}, v{A0 + 1}')
            a(f'v_cvt_pk_bf16_f32 v{A1 + 1}, v{A0 + 2}, v{A0 + 3}')
            lq.issue(f'ds_write_b64 {vQKW}, {vr(A1, 2)} offset:{M * 2048}', ('qkw', M))
        f = 0
        for M in range(2):
            for kc2 in range(4):
                for t in range(2):
                    d = QKA + 8 * M + 4 * t
                    lq.wait(('m', 2 * kc2))
                    smf(d, 2 * kc2, vr(WQK(M, t, kc2), 8))
                    lq.wait(('m', 2 * kc2 + 1)); lq.wait(('w', f))
                    smf(d, 2 * kc2 + 1, vr(STG + 8 * (f % 4), 8))
                    if f + 4 < 16:
                        for hh in range(2):
                            lq.issue(f'ds_read_b128 {vr(STG + 8 * (f % 4) + 4 * hh, 4)}, {vWS} offset:{(f + 4) * 2048 + hh * 1024}', ('w', f + 4))
                    else:
                        ws_ = f - 12
                        for T in range(2):
                            lq.issue(f'ds_read_b128 {vr(KXOP + 8 * ws_ + 4 * T, 4)}, {vKXA} offset:{ws_ * 2048 + T * 128}', ('kx', ws_))
                    f += 1
                    if M == 1 and kc2 == 0 and t == 1: finish(0)
        vq = [(t, kc) for kc in range(8) for t in range(2)]
        def vsm(n):
            for _ in range(n):
                if vq:
                    t, kc = vq.pop(0); smf(VA + 4 * t, kc, ar(WV(t, kc), 8))
        vsm(2)
        finish(1)
        vsm(4)
        lq.drain()
        a('s_barrier')
        for M, dst in ((0, QOP), (1, KOP)):
            for ws_ in range(4):
                for u in range(2):
                    lq.issue(f'ds_read_b64_tr_b16 {vr(dst + 4 * ws_ + 2 * u, 2)}, {vQKR} offset:{M * 2048 + ws_ * 512 + u * 128}', ('qk', M, ws_))
        vsm(6)
        for ws_ in range(4):
            lq.wait(('qk', 0, ws_))
            for T in (1, 2):
                d = vr(SREG + 4 * T, 4)
                a(f'v_mfma_f32_16x16x32_bf16 {d}, {vr(KXOP + 8 * ws_ + 4 * (T - 1), 4)}, {vr(QOP + 4 * ws_, 4)}, {"0" if ws_ == 0 else d}')
        for ws_ in range(4):
            lq.wait(('qk', 1, ws_))
            d = vr(SREG, 4)
            a(f'v_mfma_f32_16x16x32_bf16 {d}, {vr(KOP + 4 * ws_, 4)}, {vr(QOP + 4 * ws_, 4)}, {"0" if ws_ == 0 else d}')
        for t in range(2):
            lq.issue(f'ds_read_b128 {vr(VXOP + 4 * t, 4)}, {vVXA} offset:{t * 256}', ('vx', t))
        vsm(4)
        assert not vq
        S = lambda i: f'v{SREG + i}'
        m0, m1 = f'v{T0}', f'v{T0 + 1}'
        a(f'v_max3_f32 {m0}, {S(4)}, {S(5)}, {S(6)}')
        a(f'v_max3_f32 {m1}, {S(7)}, {S(8)}, {S(9)}')
        a(f'v_max3_f32 {m0}, {m0}, {S(10)}, {S(11)}')
        a(f'v_max3_f32 {m1}, {m1}, {S(0)}, {S(1)}')
        a(f'v_max3_f32 {m0}, {m0}, {S(2)}, {S(3)}')
        a(f'v_max_f32 {m0}, {m0}, {m1}')
        for sw in ('16', '32'):
            a(f'v_mov_b32 {m1}, {m0}')
            a(f'v_permlane{sw}_swap_b32 {m0}, {m1}')
            a(f'v_max_f32 {m0}, {m0}, {m1}')
        for i in range(12): a(f'v_sub_f32 v{EX + i}, {S(i)}, {m0}')
        for i in range(12): a(f'v_exp_f32 v{EX + i}, v{EX + i}')
        for i in range(6): a(f'v_cvt_pk_bf16_f32 v{PM + i}, v{EX + 2 * i}, v{EX + 2 * i + 1}')
        for t in range(2):
            a(f'v_cvt_pk_bf16_f32 v{VA + 4 * t}, v{VA + 4 * t}, v{VA + 4 * t + 1}')
            a(f'v_cvt_pk_bf16_f32 v{VA + 4 * t + 1}, v{VA + 4 * t + 2}, v{VA + 4 * t + 3}')
        for t in range(2):
            lq.wait(('vx', t))
            a(f'v_mfma_f32_16x16x32_bf16 {vr(OA + 4 * t, 4)}, {vr(VXOP + 4 * t, 4)}, {vr(PX, 4)}, 0')
        for t in range(2):
            a(f'v_mfma_f32_16x16x16_bf16 {vr(OA + 4 * t, 4)}, {vr(VA + 4 * t, 2)}, {vr(PM, 2)}, {vr(OA + 4 * t, 4)}')
        for t in range(2):
            lq.issue(f'ds_write_b64 {vVMW}, {vr(VA + 4 * t, 2)} offset:{t * 256}', ('vmw', t))
        E = lambda i: f'v{EX + i}'
        a(f'v_add_f32 {m0}, {E(0)}, {E(1)}'); a(f'v_add_f32 {m1}, {E(2)}, {E(3)}')
        a(f'v_add_f32 {m0}, {m0}, {m1}')
        a(f'v_add_f32 {m1}, {E(4)}, {E(5)}')
        a(f'v_fma_f32 {m0}, {m0}, 0.5, {m1}')
        a(f'v_add_f32 {m1}, {E(6)}, {E(7)}'); a(f'v_add_f32 {m0}, {m0}, {m1}')
        a(f'v_add_f32 {m1}, {E(8)}, {E(9)}'); a(f'v_add_f32 {m0}, {m0}, {m1}')
        a(f'v_add_f32 {m1}, {E(10)}, {E(11)}'); a(f'v_add_f32 {m0}, {m0}, {m1}')
        for sw in ('16', '32'):
            a(f'v_mov_b32 {m1}, {m0}')
            a(f'v_permlane{sw}_swap_b32 {m0}, {m1}')
            a(f'v_add_f32 {m0}, {m0}, {m1}')
        a(f'v_rcp_f32 {m0}, {m0}')
        for i in range(8): a(f'v_mul_f32 v{OA + i}, v{OA + i}, {m0}')
        for i in range(4): a(f'v_cvt_pk_bf16_f32 v{EX + i}, v{OA + 2 * i}, v{OA + 2 * i + 1}')
        a(f's_mov_b64 exec, {sMASK8}')
        lq.issue(f'ds_write_b128 {vOW}, {vr(EX, 4)}', 'ow')
        a(f's_mov_b64 exec, -1')
        for i in range(32): a(f'v_mov_b32 v{OUT + i}, 0')
        lq.drain()
        a('s_barrier')
        a(f's_cmp_eq_u32 {sSTEP}, 63')
        a(f's_cbranch_scc1 L_{P}_LAST')
        for kc in range(2):
            lq.issue(f'ds_read_b128 {vr(OOP + 4 * kc, 4)}, {vMEMA} offset:{kc * 1024}', ('o', kc))
        prefill()
        for tp in range(4):
            a(f's_add_u32 s{84 + tp}, {sRPW}, {tp * 16384}')
        def pair_out(tp):
            A0 = OUT + 8 * tp; A1 = A0 + 4
            for r in range(4): a(f'v_permlane32_swap_b32 v{A0 + r}, v{A1 + r}')
            for r in range(4): a(f'v_add_f32 v{A0 + r}, v{A0 + r}, v{A1 + r}')
            a(f'v_cvt_pk_bf16_f32 v{A1}, v{A0}, v{A0 + 1}')
            a(f'v_cvt_pk_bf16_f32 v{A1 + 1}, v{A0 + 2}, v{A0 + 3}')
            a(f'buffer_store_dwordx2 {vr(A1, 2)}, {vPST}, {SRD(S_WS)}, s{84 + tp} offen{SC}')
        for tp in range(4):
            for t in (2 * tp, 2 * tp + 1):
                for kc in range(2):
                    lq.wait(('o', kc))
                    a(f'v_smfmac_f32_16x16x64_bf16 {vr(OUT + 4 * t, 4)}, {vr(OOP + 4 * kc, 4)}, {ar(WO(t, kc), 8)}, {vIDX}')
            if tp >= 1: pair_out(tp - 1)
        pair_out(3)
        a(f's_cmp_eq_u32 {sWAVE}, 0')
        a(f's_cbranch_scc1 L_{P}_REDUCE')
        a(f's_cmp_eq_u32 {sWAVE}, 3')
        a(f's_cbranch_scc1 L_{P}_W3')
        def advance():
            a(f's_add_u32 {sSTEP}, {sSTEP}, 1')
            a(f's_xor_b32 {sRPW}, {sRPW}, 0x{(WS_RP ^ (WS_RP + 262144)):x}')
            a(f's_xor_b32 {sRPR}, {sRPR}, 0x{(WS_RP ^ (WS_RP + 262144)):x}')
            a(f's_mov_b32 {sRMR}, {sRMW}')
            a(f's_add_u32 {sRMW}, {sRMW}, 8192')
            a(f's_cmp_eq_u32 {sRMW}, {WS_RM + 24576}')
            a(f's_cselect_b32 {sRMW}, {WS_RM}, {sRMW}')
            a(f's_add_u32 {sKXO}, {sKXO}, {32 * 8192}')
            a(f's_add_u32 {sKMO}, {sKMO}, {32 * 2048}')
            a(f's_add_u32 {sVMO}, {sVMO}, {32 * 4096}')
        zero_qkv(); advance()
        a('s_barrier')
        a(f's_branch L_{P}_GATHER')
        a(f'L_{P}_REDUCE:')
        a(f's_add_u32 {sRPR2}, {sRPR}, 4096')
        D = QOP
        outl.append(polled_loads(a, 8, RED, vL16, [((sRPR if i < 4 else sRPR2), (i & 3) * 1024) for i in range(8)], vT, vSENT,
                                 lambda i: a(f'v_mfma_f32_16x16x32_bf16 {vr(D, 4)}, {vr(RED + 4 * i, 4)}, {vr(SEL, 4)}, {"0" if i == 0 else vr(D, 4)}'), 5, P + 'RD'))
        a(f's_mov_b64 exec, {sMASK8}')
        a(f'v_cvt_pk_bf16_f32 v{D + 4}, v{D}, v{D + 1}')
        a(f'v_cvt_pk_bf16_f32 v{D + 5}, v{D + 2}, v{D + 3}')
        a(f'buffer_store_dwordx2 {vr(D + 4, 2)}, {vRMS}, {SRD(S_WS)}, {sRMW} offen{SC}')
        a('s_barrier')
        a(f'buffer_store_dwordx2 {vr(SENTQ, 2)}, {vRMS}, {SRD(S_WS)}, {sRMR} offen{SC}')
        a(f's_mov_b64 exec, -1')
        for i in range(8):
            a(f'buffer_store_dwordx4 {vr(SENTQ, 4)}, {vL16}, {SRD(S_WS)}, {sRPR if i < 4 else sRPR2} offen offset:{(i & 3) * 1024}{SC}')
        zero_qkv(); advance()
        a('s_waitcnt vmcnt(0)')
        a(f's_branch L_{P}_B2')
        def publish():
            for i in range(4):
                a(f'ds_read_b128 {vr(MEMOP + 4 * i, 4)}, {vMEMA} offset:{L_VM - L_MEM + i * 1024}')
            a(f's_mov_b64 exec, {sMASK8}')
            for ws_ in range(4):
                a(f'buffer_store_dwordx4 {vr(KOP + 4 * ws_, 4)}, {vKMS}, {SRD(S_WS)}, {sKMO} offen offset:{ws_ * 512} sc1')
            a(f's_mov_b64 exec, -1')
            a('s_waitcnt lgkmcnt(0)')
            for i in range(4):
                a(f'buffer_store_dwordx4 {vr(MEMOP + 4 * i, 4)}, {vL16}, {SRD(S_WS)}, {sVMO} offen offset:{i * 1024} sc1')
        def flag():
            a(f'v_mov_b32 {vT}, {sSTEP}')
            a(f'v_mov_b32 {vT2}, 0')
            a(f's_mov_b64 exec, 1')
            a(f'buffer_store_dword {vT}, {vT2}, {SRD(S_WS)}, {sFLR} offen sc1')
            a(f's_mov_b64 exec, -1')
        a(f'L_{P}_W3:')
        publish()
        a('s_barrier')
        zero_qkv(); advance()
        kv_wait(sSTEP, P + 'kv')
        kv_dma()
        flag()
        a('s_waitcnt vmcnt(1)')
        a(f's_branch L_{P}_B2')
        a(f'L_{P}_LAST:')
        a(f's_cmp_lg_u32 {sWAVE}, 3')
        a(f's_cbranch_scc1 L_{P}_EXIT')
        publish()
        a(f's_add_u32 {sSTEP}, {sSTEP}, 1')
        a('s_waitcnt vmcnt(0)')
        flag()
        a(f'L_{P}_EXIT:')
        G.stamp(a, cfg, 3, vT, vT2)
        a('s_endpgm')
        for o in outl: o()
    loop('FAST')
    loop('SLOW')


def make_sel(a, SEL, vT, vT2):
    a(f'v_and_b32 {vT}, 1, {vLANE}')
    a(f'v_lshlrev_b32 {vT}, 4, {vT}')
    a(f'v_mov_b32 {vT2}, 0x3f80')
    a(f'v_lshlrev_b32 {vT2}, {vT}, {vT2}')
    a(f'v_bfe_u32 {vT}, {vLANE}, 1, 3')
    for i in range(4):
        a(f'v_cmp_eq_u32 vcc, {i}, {vT}')
        a(f'v_cndmask_b32 v{SEL + i}, 0, {vT2}, vcc')

NEG = f32(-1e30)
LOG2E = math.log2(math.e)

def make_bias(a, base, allow_le, vT, vT2, vT3):
    a(f'v_and_b32 {vT}, 31, {vLANE}')
    a(f'v_lshrrev_b32 {vT2}, 5, {vLANE}')
    a(f'v_lshlrev_b32 {vT2}, 2, {vT2}')
    a(f'v_sub_u32 {vT}, {vT}, {vT2}')
    a(f'v_mov_b32 {vT3}, {NEG}')
    for r in range(16):
        k = 8 * (r >> 2) + (r & 3)
        a(f'v_cmp_le_i32 vcc, {k}, {vT}')
        if allow_le: a(f'v_cndmask_b32 v{base + r}, {vT3}, 0, vcc')
        else: a(f'v_cndmask_b32 v{base + r}, 0, {vT3}, vcc')

def role_b(a, cfg):
    NB = cfg.roles.count('B'); assert NB == 2
    L_RING = 98304; L_Z = L_RING + 49152; L_RAW = 98304
    sT0, sT1, sT2, sIT, sNIT, sTB, sSLOT, sNSLOT, sXO, sWB, sFL, sDONE, sC, sOBO, sGO, sWARM, sKB = [f's{i}' for i in range(60, 77)]
    sMZ = 's[78:79]'; sMHI = 's[80:81]'
    vL16 = 'v1'; vXS = 2; vRA0 = 6; vT, vT2, vMX, vGS, vZW, vZR, vTA, vT3, vONE = [f'v{i}' for i in range(14, 23)]
    BD = 24; BF = 40; S = 56; OA = 200; QF = 216; FR = 220
    vRA = S + 64; XF = S; A1 = S + 32; A2 = S + 48; PK = S + 72
    a('L_ROLE_B:')
    a(f'v_lshlrev_b32 {vL16}, 4, {vLANE}')
    a(f's_mul_i32 {sTB}, {sGRP}, 24')
    a(f's_lshl_b32 {sWARM}, {sGRP}, 1')
    a(f's_add_u32 {sNIT}, {sWARM}, 8')
    a(f'v_lshlrev_b32 {vT}, 7, {vLANE}')
    a(f's_lshl_b32 {sT0}, {sTB}, 15')
    a(f's_mul_i32 {sT1}, {sHEAD}, 40960')
    a(f's_add_u32 {sT0}, {sT0}, {sT1}')
    a(f's_mul_i32 {sT1}, {sWAVE}, 10240')
    a(f's_add_u32 {sT0}, {sT0}, {sT1}')
    a(f'buffer_load_dword v30, {vT}, {SRD(S_X)}, {sT0} offen')
    a(f's_add_u32 {sT0}, {sT0}, 2048')
    a(f'buffer_load_dword v31, {vT}, {SRD(S_X)}, {sT0} offen')
    a(f's_add_u32 {sTB}, {sTB}, {sWAVE}')
    a.lane_affine(vT2, lambda l: (l >> 3) * 3072 + ((l & 7) >> 1) * 1024 + (l & 1) * 16, vLANE, vT)
    a(f's_mul_i32 {sT0}, {sWAVE}, {16 * 8 * 3072}')
    a(f's_lshl_b32 s3, {sHEAD}, 5')
    a(f's_add_u32 {sT0}, {sT0}, s3')
    a(f's_lshl_b32 {sT1}, {sWAVE}, 14')
    a(f's_add_u32 {sT1}, {sT1}, {L_RAW}')
    for n in range(16):
        a(f's_add_u32 m0, {sT1}, {n * 1024}')
        a(f's_add_u32 {sT2}, {sT0}, {n * 8 * 3072}')
        a(f'buffer_load_dwordx4 {vT2}, {SRD(S_BQKV)}, {sT2} offen lds')
    a(f's_lshl_b32 s3, {sWAVE}, 7')
    a(f'v_lshlrev_b32 {vT}, 1, {vLANE}')
    a(f'buffer_load_ushort v28, {vT}, {SRD(S_GATE)}, s3 offen')
    a(f'buffer_load_ushort v29, {vT}, {SRD(S_GATE)}, s3 offen offset:512')
    a.lane_affine(vT, lambda l: (l & 15) * 16, vLANE, vT3)
    a.lane_affine(vT2, lambda l: (l >> 4) * 16, vLANE, vT3)
    a.lane_affine(vTA, lambda l: (l >> 4) * 1024, vLANE, vT3)
    for n in range(4):
        a(f'v_add_u32 {vT3}, {64 * n}, {vT2}')
        a(f'v_xor_b32 {vT3}, {vT3}, {vT}')
        a(f'v_add_u32 v{vXS + n}, {vTA}, {vT3}')
        if n: a(f'v_add_u32 v{vXS + n}, {4096 * n}, v{vXS + n}')
    a(f's_mul_i32 {sWB}, {sWAVE}, 24576')
    def x_dma(n, slot_s, xo_s):
        a(f's_add_u32 m0, {slot_s}, {n * 1024}')
        if n >= 4:
            a(f's_add_u32 s3, {xo_s}, 16384')
        a(f'buffer_load_dwordx4 v{vXS + (n & 3)}, {SRD(S_X)}, {"s3" if n >= 4 else xo_s} offen lds')
    a(f's_lshl_b32 {sXO}, {sTB}, 15')
    for n in range(8): x_dma(n, sWB, sXO)
    a(f's_add_u32 {sT0}, {sWB}, 8192'); a(f's_add_u32 {sT1}, {sXO}, 256')
    for n in range(8): x_dma(n, sT0, sT1)
    a.lane_affine(vT, lambda l: (l >> 5) * 16, vLANE, vT3)
    a.lane_affine(vT2, lambda l: (l & 15) * 16, vLANE, vT3)
    a.lane_affine(vTA, lambda l: (l & 31) * 256, vLANE, vT3)
    for j in range(8):
        a(f'v_add_u32 {vT3}, {32 * j}, {vT}')
        a(f'v_xor_b32 {vT3}, {vT3}, {vT2}')
        a(f'v_add_u32 v{vRA0 + j}, {vT3}, {vTA}')
    a('s_waitcnt vmcnt(16)')
    a('s_barrier')
    a(f's_lshl_b32 s3, {sWAVE}, 13')
    a(f'v_lshlrev_b32 {vT}, 7, {vLANE}')
    a(f'v_add_u32 {vT}, s3, {vT}')
    a(f'v_add_u32 {vT}, {L_RAW + 96}, {vT}')
    a(f'ds_write_b16 {vT}, v28')
    a(f'ds_write_b16 {vT}, v29 offset:32768')
    a('s_waitcnt lgkmcnt(0)')
    a('s_barrier')
    a.lane_affine(vT, lambda l: L_RAW + (8 * (l >> 5) + ((l & 15) >> 2)) * 128 + ((l >> 4) & 1) * 32 + (l & 3) * 8, vLANE, vT3)
    for T in range(2):
        for ks in range(32):
            for u in range(2):
                a(f'ds_read_b64_tr_b16 {ar(T * 128 + ks * 4 + 2 * u, 2)}, {vT} offset:{ks * 2048 + u * 512 + T * 64}')
    make_bias(a, BD, True, vT2, vT3, vTA)
    make_bias(a, BF, False, vT2, vT3, vTA)
    a('s_waitcnt lgkmcnt(0)')
    a('s_barrier')
    for i in range(4): a(f'v_mov_b32 v{OA + i}, 0')
    a(f's_mul_i32 s3, {sWAVE}, 12288')
    a(f'v_add_u32 {vT}, s3, {vL16}')
    a(f'v_add_u32 {vT}, {L_RING}, {vT}')
    for i in range(12): a(f'ds_write_b128 {vT}, {vr(OA, 4)} offset:{i * 1024}')
    a(f's_lshl_b32 s3, {sWAVE}, 7')
    a.lane_affine(vZW, lambda l: L_Z + (l >> 5) * 16, vLANE, vT3); a(f'v_add_u32 {vZW}, s3, {vZW}')
    a.lane_affine(vZR, lambda l: L_Z + (l & 31) * 4, vLANE, vT3); a(f'v_add_u32 {vZR}, s3, {vZR}')
    a(f's_mov_b32 s78, 0x00010000'); a(f's_mov_b32 s79, 0x00010000')
    a(f's_mov_b32 s80, 0xffff0000'); a(f's_mov_b32 s81, 0xffff0000')
    a(f'v_mov_b32 {vONE}, 0x3f803f80')
    a(f's_mov_b32 {sC}, {f32(0.25 * LOG2E)}')
    a(f's_mul_i32 {sFL}, {sGRP}, {32 * 128}'); a(f's_lshl_b32 s3, {sHEAD}, 7'); a(f's_add_u32 {sFL}, {sFL}, s3'); a(f's_add_u32 {sFL}, {sFL}, {FL_B(0, 0)}')
    a(f's_lshl_b32 {sOBO}, {sHEAD}, 16'); a(f's_add_u32 {sOBO}, {sOBO}, {WS_OB}')
    a(f's_lshl_b32 {sGO}, {sHEAD}, 13'); a(f's_add_u32 {sGO}, {sGO}, {WS_G}')
    G.stamp(a, cfg, 1, vT, vT2)
    G.wait_init(a, vT, vT2)
    a('s_waitcnt lgkmcnt(0)')
    a('s_barrier')
    a(f's_mov_b32 {sIT}, 0'); a(f's_mov_b32 {sDONE}, 0')
    a(f's_mov_b32 {sSLOT}, {sWB}')
    a(f's_add_u32 {sNSLOT}, {sWB}, 16384')
    def next_slot(s):
        a(f's_add_u32 {s}, {s}, 8192')
        a(f's_sub_u32 s3, {s}, {sWB}')
        a(f's_cmp_eq_u32 s3, 24576')
        a(f's_cselect_b32 {s}, {sWB}, {s}')
    a('L_B_LOOP:')
    lq = LQ(a)
    for q in range(4):
        if q >= 2: a('s_waitcnt vmcnt(8)')
        for j in range(8): a(f'v_add_u32 v{vRA + j}, {sSLOT}, v{vRA0 + j}')
        for j in range(8): lq.issue(f'ds_read_b128 {vr(XF + 4 * j, 4)}, v{vRA + j}', ('x', q, j))
        if q < 2: a(f's_add_u32 {sT1}, {sXO}, {(q + 2) * 256}')
        else: a(f's_add_u32 {sT1}, {sXO}, {4 * 32768 + (q - 2) * 256}')
        for j in range(8):
            ks = 8 * q + j
            lq.wait(('x', q, j))
            xf = vr(XF + 4 * j, 4)
            a(f'v_mfma_f32_32x32x16_bf16 {vr(A1, 16)}, {ar(ks * 4, 4)}, {xf}, {"0" if ks == 0 else vr(A1, 16)}')
            a(f'v_mfma_f32_32x32x16_bf16 {vr(A2, 16)}, {xf}, {ar(128 + ks * 4, 4)}, {"0" if ks == 0 else vr(A2, 16)}')
            x_dma(j, sNSLOT, sT1)
        next_slot(sSLOT); next_slot(sNSLOT)
    a(f's_and_b32 {sT0}, {sTB}, 15'); a(f's_mul_i32 {sT0}, {sT0}, 3072'); a(f's_add_u32 {sT0}, {sT0}, {L_RING}')
    a(f'v_add_u32 {vTA}, {sT0}, {vL16}')
    for i in range(4): a(f'v_cvt_pk_bf16_f32 v{QF + i}, v{A1 + 2 * i}, v{A1 + 2 * i + 1}')
    for i in range(4): a(f'v_cvt_pk_bf16_f32 v{PK + i}, v{A1 + 8 + 2 * i}, v{A1 + 8 + 2 * i + 1}')
    a(f'ds_write_b128 {vTA}, {vr(PK, 4)}')
    a(f's_mov_b64 exec, {sMZ}')
    for i in range(4): a(f'ds_write_b128 {vZW}, {vr(A2 + 4 * i, 4)} offset:{i * 32}')
    a(f's_mov_b64 exec, -1')
    for i in range(8): a(f'v_cvt_pk_bf16_f32 v{PK + 4 + i}, v{A2 + 2 * i}, v{A2 + 2 * i + 1}')
    for i in range(8): a(f'v_cndmask_b32 v{PK + 4 + i}, v{PK + 4 + i}, {vONE}, {sMHI}')
    a(f'ds_write_b128 {vTA}, {vr(PK + 4, 4)} offset:1024')
    a(f'ds_write_b128 {vTA}, {vr(PK + 8, 4)} offset:2048')
    a(f'ds_read_b32 {vGS}, {vZR}')
    a('s_waitcnt lgkmcnt(0)')
    a('s_barrier')
    a(f's_cmp_lg_u32 {sWAVE}, 0')
    a(f's_cbranch_scc1 L_B_NOFLAG')
    a(f'v_mov_b32 {vT}, {sDONE}'); a(f'v_mov_b32 {vT2}, 0')
    a(f's_mov_b64 exec, 1')
    a(f'buffer_store_dword {vT}, {vT2}, {SRD(S_WS)}, {sFL} offen sc1')
    a(f's_mov_b64 exec, -1')
    a('L_B_NOFLAG:')
    a(f's_cmp_lt_u32 {sIT}, {sWARM}')
    a(f's_cbranch_scc1 L_B_SKIP')
    for d in range(9):
        a(f's_add_u32 s3, {sTB}, {d + 8}')
        a(f's_and_b32 s3, s3, 15')
        a(f's_mul_i32 s{84 + d}, s3, 3072')
        a(f's_add_u32 s{84 + d}, s{84 + d}, {L_RING}')
    lq = LQ(a)
    TAs = [vTA, vT3]
    for d in range(9):
        ta = TAs[d & 1]
        a(f'v_add_u32 {ta}, s{84 + d}, {vL16}')
        lq.issue(f'ds_read_b128 {vr(FR + 4 * d, 4)}, {ta}', ('k', d))
    a(f'v_mul_f32 {vGS}, {f32(-LOG2E)}, {vGS}')
    a(f'v_exp_f32 {vGS}, {vGS}')
    a(f'v_add_f32 {vGS}, 1.0, {vGS}')
    a(f'v_rcp_f32 {vGS}, {vGS}')
    for d in range(9):
        lq.wait(('k', d))
        c = vr(BF, 16) if d == 0 else vr(BD, 16) if d == 8 else '0'
        a(f'v_mfma_f32_32x32x16_bf16 {vr(S + 16 * d, 16)}, {vr(FR + 4 * d, 4)}, {vr(QF, 4)}, {c}')
    def vrd(f):
        d, jj = f >> 1, f & 1
        ta = TAs[d & 1]
        if jj == 0: a(f'v_add_u32 {ta}, s{84 + d}, {vL16}')
        lq.issue(f'ds_read_b128 {vr(FR + 4 * (f % 8), 4)}, {ta} offset:{1024 + jj * 1024}', ('v', f))
    for f in range(8): vrd(f)
    a(f's_cmp_ge_u32 {sTB}, 8')
    a(f's_cbranch_scc1 L_B_ALLVALID')
    a('s_nop 15')
    for d in range(8):
        a(f's_cmp_ge_u32 {sTB}, {8 - d}')
        a(f's_cbranch_scc1 L_B_ALLVALID')
        for r in range(16): a(f'v_mov_b32 v{S + 16 * d + r}, {NEG}')
    a('L_B_ALLVALID:')
    a(f'v_max3_f32 {vMX}, v{S}, v{S + 1}, v{S + 2}')
    a(f'v_max_f32 {vT}, v{S + 3}, v{S + 4}')
    i = 5; tog = 0
    while i < 144:
        acc = vMX if tog == 0 else vT
        if i + 1 < 144: a(f'v_max3_f32 {acc}, {acc}, v{S + i}, v{S + i + 1}'); i += 2
        else: a(f'v_max_f32 {acc}, {acc}, v{S + i}'); i += 1
        tog ^= 1
    a(f'v_max_f32 {vMX}, {vMX}, {vT}')
    a(f'v_mov_b32 {vT}, {vMX}')
    a(f'v_permlane32_swap_b32 {vMX}, {vT}')
    a(f'v_max_f32 {vMX}, {vMX}, {vT}')
    a(f'v_mul_f32 {vMX}, {sC}, {vMX}')
    for d in range(9):
        b = S + 16 * d
        for r in range(16): a(f'v_fma_f32 v{b + r}, v{b + r}, {sC}, -{vMX}')
        for r in range(16): a(f'v_exp_f32 v{b + r}, v{b + r}')
        for r in range(8): a(f'v_cvt_pk_bf16_f32 v{b + r}, v{b + 2 * r}, v{b + 2 * r + 1}')
        for jj in range(2):
            f = 2 * d + jj
            lq.wait(('v', f))
            a(f'v_mfma_f32_32x32x16_bf16 {vr(OA, 16)}, {vr(FR + 4 * (f % 8), 4)}, {vr(b + 4 * jj, 4)}, {"0" if f == 0 else vr(OA, 16)}')
            if f + 8 < 18: vrd(f + 8)
    a(f'v_sub_f32 {vT2}, 1.0, {vGS}')
    a(f's_lshl_b32 {sT0}, {sTB}, 10'); a(f's_add_u32 {sT0}, {sT0}, {sOBO}')
    a(f's_lshl_b32 {sT1}, {sTB}, 7'); a(f's_add_u32 {sT1}, {sT1}, {sGO}')
    a(f'v_rcp_f32 {vT}, v{OA + 8}')
    a(f'v_mul_f32 {vT}, {vT}, {vT2}')
    for i in range(8): a(f'v_mul_f32 v{OA + i}, v{OA + i}, {vT}')
    for i in range(4): a(f'v_cvt_pk_bf16_f32 v{OA + 8 + i}, v{OA + 2 * i}, v{OA + 2 * i + 1}')
    a(f'v_lshlrev_b32 {vT}, 2, {vLANE}')
    a('s_waitcnt vmcnt(0)')
    a(f'buffer_store_dwordx4 {vr(OA + 8, 4)}, {vL16}, {SRD(S_WS)}, {sT0} offen sc1')
    a(f's_mov_b64 exec, 0xffffffff')
    a(f'buffer_store_dword {vGS}, {vT}, {SRD(S_WS)}, {sT1} offen sc1')
    a(f's_mov_b64 exec, -1')
    a(f's_add_u32 {sDONE}, {sDONE}, 4')
    a('s_branch L_B_NEXT')
    a('L_B_SKIP:')
    a('s_waitcnt vmcnt(0)')
    a('L_B_NEXT:')
    a(f's_add_u32 {sTB}, {sTB}, 4')
    a(f's_add_u32 {sXO}, {sXO}, {4 * 32768}')
    a(f's_add_u32 {sIT}, {sIT}, 1')
    a(f's_cmp_lt_u32 {sIT}, {sNIT}')
    a('s_cbranch_scc1 L_B_LOOP')
    a('s_waitcnt vmcnt(0)')
    a('s_barrier')
    a(f'v_mov_b32 {vT}, {sDONE}'); a(f'v_mov_b32 {vT2}, 0')
    a(f's_mov_b64 exec, 1')
    a(f'buffer_store_dword {vT}, {vT2}, {SRD(S_WS)}, {sFL} offen sc1')
    a(f's_mov_b64 exec, -1')
    G.stamp(a, cfg, 2, vT, vT2)
    a('s_endpgm')


def role_qa(a, cfg):
    NG = cfg.roles.count('QA')
    L_QX = 131072; L_OX = L_QX + 8192
    NSLOT = 6; RING0 = 65536
    sRING, sT0, sT1, sT2, sCOL, sI, sN, sSEG, sBUF, sXO, sFLQ, sFLR, sFLB, sC, sOC, sSH, sPW, sPSEG = [f's{i}' for i in range(60, 78)]
    vL16 = 'v1'; vT, vT2, vT3, vMX, vG, vQW, vQR, vKMA, vRDA, vOUTA, vL4 = [f'v{i}' for i in range(2, 13)]
    SEL = 16; vXS = 20; vRA0 = 28; vRA = 36; BIAS = 44
    XF = 60
    QOP = 60
    QA_ = 92
    KX = 108
    KM = 140
    SX = 172; SM = 188
    VF = 204
    PKD = 220
    OUT = 108
    RED = 172
    WO8 = 240
    a('L_ROLE_QA:')
    a(f's_sub_u32 {sN}, {64 + NG - 1}, {sGRP}')
    if NG == 2: a(f's_lshr_b32 {sN}, {sN}, 1')
    elif NG == 3:
        a(f's_mul_i32 {sN}, {sN}, 43'); a(f's_lshr_b32 {sN}, {sN}, 7')
    elif NG != 1: raise ValueError
    a(f'v_lshlrev_b32 {vL16}, 4, {vLANE}')
    a(f'v_lshlrev_b32 {vL4}, 2, {vLANE}')
    a(f's_lshl_b32 {sT0}, {sWAVE}, 3')
    for j in range(8):
        a(f's_add_u32 {sT1}, {sT0}, {j}')
        a(f's_and_b32 s3, {sT1}, 15')
        a(f's_lshl_b32 s3, s3, 4')
        a(f'v_xor_b32 v{vXS + j}, s3, {vL16}')
        a(f's_lshl_b32 s3, {sT1}, 10')
        a(f'v_add_u32 v{vXS + j}, s3, v{vXS + j}')
    sXB = 's78'
    def x_setup(seg_s, buf):
        a(f's_lshl_b32 {sXO}, {seg_s}, 15')
        a(f's_lshl_b32 {sXB}, {sWAVE}, 13')
        a(f's_add_u32 {sXB}, {sXB}, {buf}')
    def x_dma(j):
        a(f's_add_u32 m0, {sXB}, {j * 1024}')
        a(f'buffer_load_dwordx4 v{vXS + j}, {SRD(S_X)}, {sXO} offen lds')
    a(f's_mov_b32 {sSEG}, {sGRP}')
    x_setup(sSEG, 0)
    for j in range(8): x_dma(j)
    a(f's_add_u32 {sT0}, {sGRP}, {NG}')
    x_setup(sT0, 32768)
    for j in range(8): x_dma(j)
    a.lane_affine(vT, lambda l: (l >> 5) * 16, vLANE, vT3)
    a.lane_affine(vT2, lambda l: (l & 15) * 16, vLANE, vT3)
    a.lane_affine(vMX, lambda l: (l & 31) * 1024, vLANE, vT3)
    for j in range(8):
        a(f'v_add_u32 {vT3}, {32 * j}, {vT}')
        a(f'v_xor_b32 {vT3}, {vT3}, {vT2}')
        a(f'v_add_u32 v{vRA0 + j}, {vT3}, {vMX}')
    vWOFF, vTR, vWOFF2, vTR2 = 'v60', 'v61', 'v62', 'v63'
    a(f's_mul_i32 {sRING}, {sWAVE}, {NSLOT * 4096}')
    a(f's_add_u32 {sRING}, {sRING}, {RING0}')
    a.lane_affine(vWOFF, lambda l: (l >> 2) * 8192 + (l & 3) * 16, vLANE, vT)
    a.lane_affine(vTR, lambda l: (8 * (l >> 5) + ((l & 15) >> 2)) * 64 + (16 * ((l >> 4) & 1) + 4 * (l & 3)) * 2, vLANE, vT)
    a(f'v_add_u32 {vTR}, {sRING}, {vTR}')
    a.lane_affine(vWOFF2, lambda l: (l >> 4) * 1024 + (l & 15) * 16, vLANE, vT)
    a.lane_affine(vTR2, lambda l: (4 * (l >> 5) + ((l & 15) >> 2)) * 256 + ((l >> 4) & 1) * 32 + (l & 3) * 8, vLANE, vT)
    a(f'v_add_u32 {vTR2}, {sRING}, {vTR2}')
    a(f's_lshl_b32 {sCOL}, {sHEAD}, 8'); a(f's_lshl_b32 s3, {sWAVE}, 6'); a(f's_add_u32 {sCOL}, {sCOL}, s3')
    a(f's_lshl_b32 {sOC}, {sHEAD}, 17'); a(f's_lshl_b32 s3, {sWAVE}, 8'); a(f's_add_u32 {sOC}, {sOC}, s3')
    a(f's_lshl_b32 {sT2}, {sHEAD}, 14'); a(f's_add_u32 {sT2}, {sT2}, s3')
    def WO(ks, t):
        return ('a', 128 + (ks * 4 + t) * 4) if ks < 8 else ('v', WO8 + t * 4)
    blocks = []
    for blk in range(8):
        reads = []
        for k4 in range(4):
            ks = blk * 4 + k4
            reads.append((ar(ks * 4, 2), vTR, k4 * 1024)); reads.append((ar(ks * 4 + 2, 2), vTR, k4 * 1024 + 256))
        blocks.append(dict(srd=SRD(S_WQ), voff=vWOFF, soffs=[(sCOL, (64 * blk + 16 * i) * 8192) for i in range(4)], reads=reads))
    for ks in range(9):
        reads = []
        for t in range(4):
            k, b = WO(ks, t)
            reads.append((vr(b, 2, k), vTR2, t * 64)); reads.append((vr(b + 2, 2, k), vTR2, t * 64 + 2048))
        if ks < 8: blocks.append(dict(srd=SRD(S_WO), voff=vWOFF2, soffs=[(sOC, (16 * ks + 4 * i) * 1024) for i in range(4)], reads=reads))
        else: blocks.append(dict(srd=SRD(S_BWO), voff=vWOFF2, soffs=[(sT2, (4 * i) * 1024) for i in range(4)], reads=reads))
    G.load_weights(a, blocks, sRING, NSLOT, None, sT1)
    G.stamp(a, cfg, 1, vT, vT2)
    make_sel(a, SEL, vT, vT2)
    make_bias(a, BIAS, True, vT, vT2, vT3)
    a(f's_lshl_b32 s3, {sWAVE}, 11')
    a(f'v_add_u32 {vQW}, s3, {vL16}'); a(f'v_add_u32 {vQW}, {L_QX}, {vQW}')
    a(f'v_add_u32 {vQR}, {L_QX}, {vL16}')
    a.lane_affine(vKMA, lambda l: (l >> 5) * 128 + (l & 7) * 16, vLANE, vT)
    a.lane_affine(vRDA, lambda l: (l >> 4) * 1024 + (l & 15) * 16, vLANE, vT)
    a(f's_lshl_b32 s3, {sWAVE}, 8'); a(f'v_add_u32 {vRDA}, s3, {vRDA}')
    a.lane_affine(vOUTA, lambda l: (l & 15) * 1024 + ((l >> 4) & 1) * 16, vLANE, vT)
    a(f's_and_b32 s3, {sWAVE}, 1'); a(f's_lshl_b32 s3, s3, 14'); a(f'v_add_u32 {vOUTA}, s3, {vOUTA}')
    a(f's_lshr_b32 s3, {sWAVE}, 1'); a(f's_lshl_b32 s3, s3, 3'); a(f'v_add_u32 {vOUTA}, s3, {vOUTA}')
    a(f's_lshl_b32 s3, {sHEAD}, 5'); a(f'v_add_u32 {vOUTA}, s3, {vOUTA}')
    a(f's_mov_b32 {sC}, {f32(128 ** -0.5 * LOG2E)}')
    a(f's_lshl_b32 {sFLQ}, {sGRP}, 7'); a(f's_add_u32 {sFLQ}, {sFLQ}, {FL_QA(0)}')
    a(f's_lshl_b32 s3, {sHEAD}, 7')
    a(f's_add_u32 {sFLR}, s3, {FL_R(0)}')
    a(f's_add_u32 {sFLB}, s3, {FL_B(0, 0)}')
    G.wait_init(a, vT, vT2)
    a('s_barrier')
    a(f's_add_u32 {sT0}, {sGRP}, {2 * NG}')
    x_setup(sT0, 65536)
    for j in range(8): x_dma(j)
    a(f's_mov_b32 {sI}, 0'); a(f's_mov_b32 {sBUF}, 0')

    def qflag():
        L = a.label('L_QA_NOFLAG')
        a(f's_cmp_lg_u32 {sWAVE}, 0')
        a(f's_cbranch_scc1 {L}')
        a(f's_lshl_b32 s3, {sHEAD}, 2')
        a(f'v_mov_b32 {vT}, {sI}'); a(f'v_mov_b32 {vT2}, s3')
        a(f's_mov_b64 exec, 1')
        a(f'buffer_store_dword {vT}, {vT2}, {SRD(S_WS)}, {sFLQ} offen sc1')
        a(f's_mov_b64 exec, -1')
        a(f'{L}:')
    def reduce_prev():
        L = a.label('L_QA_RP'); D = a.label('L_QA_RD')
        a(f's_mov_b32 {sSPIN}, 0')
        a(f'v_and_b32 {vT2}, 0x7f, {vL4}')
        a(f'{L}:')
        a(f'buffer_load_dword {vT}, {vT2}, {SRD(S_WS)}, {sFLQ} offen sc1')
        a('s_waitcnt vmcnt(0)')
        a(f'v_cmp_gt_u32 vcc, {sI}, {vT}')
        a(f's_cbranch_vccz {D}')
        a('s_sleep 2')
        G.spin_check(a, 8)
        a(f's_branch {L}')
        a(f'{D}:')
        a(f's_lshl_b32 {sT0}, {sPSEG}, 5'); a(f's_add_u32 {sT0}, {sT0}, {sHEAD}'); a(f's_lshl_b32 {sT0}, {sT0}, 15'); a(f's_add_u32 {sT0}, {sT0}, {WS_PART}')
        for i in range(8):
            a(f's_add_u32 {sT1}, {sT0}, {i * 4096}')
            a(f'buffer_load_dwordx4 {vr(RED + 4 * i, 4)}, {vRDA}, {SRD(S_WS)}, {sT1} offen sc1')
        a(f's_lshl_b32 {sT0}, {sPSEG}, 15')
        D4 = VF
        for i in range(8):
            a(f's_waitcnt vmcnt({7 - i})')
            a(f'v_mfma_f32_16x16x32_bf16 {vr(D4, 4)}, {vr(SEL, 4)}, {vr(RED + 4 * i, 4)}, {"0" if i == 0 else vr(D4, 4)}')
        a(f'v_cvt_pk_bf16_f32 v{D4 + 4}, v{D4}, v{D4 + 1}')
        a(f'v_cvt_pk_bf16_f32 v{D4 + 5}, v{D4 + 2}, v{D4 + 3}')
        a(f's_mov_b64 exec, 0xffffffff')
        a(f'buffer_store_dwordx2 {vr(D4 + 4, 2)}, {vOUTA}, {SRD(S_OUT)}, {sT0} offen')
        a(f's_mov_b64 exec, -1')

    a('L_QA_LOOP:')
    a('s_waitcnt vmcnt(0)')
    a('s_barrier')
    qflag()
    lq = LQ(a)
    for j in range(8): a(f'v_add_u32 v{vRA + j}, {sBUF}, v{vRA0 + j}')
    NXF = 8; PRE = 7
    def rd(ks): lq.issue(f'ds_read_b128 {vr(XF + 4 * (ks % NXF), 4)}, v{vRA + (ks & 7)} offset:{(ks >> 3) * 256}', ('x', ks))
    for ks in range(PRE): rd(ks)
    a(f's_add_u32 {sT0}, {sSEG}, {3 * NG}')
    a(f's_add_u32 {sT1}, {sBUF}, {3 * 32768}')
    a(f's_and_b32 {sT1}, {sT1}, 0x1ffff')
    x_setup(sT0, sT1)
    for ks in range(32):
        lq.wait(('x', ks))
        a(f'v_mfma_f32_32x32x16_bf16 {vr(QA_, 16)}, {ar(ks * 4, 4)}, {vr(XF + 4 * (ks % NXF), 4)}, {"0" if ks == 0 else vr(QA_, 16)}')
        if ks + PRE < 32: rd(ks + PRE)
        if ks % 4 == 1: x_dma(ks // 4)
    for i in range(8): a(f'v_cvt_pk_bf16_f32 v{PKD + i}, v{QA_ + 2 * i}, v{QA_ + 2 * i + 1}')
    a(f'ds_write_b128 {vQW}, {vr(PKD, 4)}')
    a(f'ds_write_b128 {vQW}, {vr(PKD + 4, 4)} offset:1024')
    a('s_waitcnt lgkmcnt(0)')
    a('s_barrier')
    for i in range(8): a(f'ds_read_b128 {vr(QOP + 4 * i, 4)}, {vQR} offset:{i * 1024}')
    a(f's_cmp_eq_u32 {sI}, 0')
    a(f's_cbranch_scc1 L_QA_NORED')
    reduce_prev()
    a('L_QA_NORED:')
    a(f'v_mov_b32 {vT2}, 0')
    a(f's_lshr_b32 {sT0}, {sSEG}, 5'); a(f's_lshl_b32 {sT0}, {sT0}, 12'); a(f's_add_u32 {sT0}, {sT0}, {sFLB}')
    a(f's_and_b32 {sT1}, {sSEG}, 31'); a(f's_add_u32 {sT1}, {sT1}, 1')
    G.wait_ge(a, SRD(S_WS), vT2, sT0, sT1, vT, 's3', 6)
    a(f's_add_u32 {sT1}, {sSEG}, 1')
    G.wait_ge(a, SRD(S_WS), vT2, sFLR, sT1, vT, 's3', 7)
    if cfg.ts:
        a(f's_add_u32 s3, {sI}, 8'); G.stamp(a, cfg, 's3', vT, vT2)
    a(f's_lshl_b32 {sSH}, {sSEG}, 5'); a(f's_add_u32 {sSH}, {sSH}, {sHEAD}')
    a(f's_lshl_b32 {sT0}, {sSH}, 13'); a(f's_add_u32 {sT0}, {sT0}, {WS_KX}')
    a(f's_add_u32 {sT1}, {sT0}, 4096')
    for i in range(8):
        a(f'buffer_load_dwordx4 {vr(KX + 4 * i, 4)}, {vL16}, {SRD(S_WS)}, {sT0 if i < 4 else sT1} offen offset:{(i & 3) * 1024} sc1')
    a(f's_lshl_b32 {sT2}, {sSH}, 11'); a(f's_add_u32 {sT2}, {sT2}, {WS_KM}')
    for i in range(8):
        a(f'buffer_load_dwordx4 {vr(KM + 4 * i, 4)}, {vKMA}, {SRD(S_WS)}, {sT2} offen offset:{i * 256} sc1')
    a(f's_lshl_b32 s3, {sWAVE}, 11'); a(f's_add_u32 {sT0}, {sT0}, s3'); a(f's_add_u32 {sT0}, {sT0}, {WS_VX - WS_KX}')
    for i in range(2):
        a(f'buffer_load_dwordx4 {vr(VF + 4 * i, 4)}, {vL16}, {SRD(S_WS)}, {sT0} offen offset:{i * 1024} sc1')
    a(f's_lshl_b32 {sT1}, {sSH}, 12'); a(f's_lshl_b32 s3, {sWAVE}, 10'); a(f's_add_u32 {sT1}, {sT1}, s3'); a(f's_add_u32 {sT1}, {sT1}, {WS_VM}')
    a(f'buffer_load_dwordx4 {vr(VF + 8, 4)}, {vL16}, {SRD(S_WS)}, {sT1} offen sc1')
    a(f's_lshl_b32 {sT2}, {sHEAD}, 16'); a(f's_lshl_b32 s3, {sSEG}, 10'); a(f's_add_u32 {sT2}, {sT2}, s3'); a(f's_add_u32 {sT2}, {sT2}, {WS_OB}')
    a(f'buffer_load_dwordx4 {vr(VF + 12, 4)}, {vL16}, {SRD(S_WS)}, {sT2} offen sc1')
    a(f's_lshl_b32 {sT0}, {sHEAD}, 13'); a(f's_lshl_b32 s3, {sSEG}, 7'); a(f's_add_u32 {sT0}, {sT0}, s3'); a(f's_add_u32 {sT0}, {sT0}, {WS_G}')
    a(f'v_and_b32 {vT2}, 0x7f, {vL4}')
    a(f'buffer_load_dword {vG}, {vT2}, {SRD(S_WS)}, {sT0} offen sc1')
    a('s_waitcnt lgkmcnt(0)')
    for i in range(8):
        a(f's_waitcnt vmcnt({20 - i})')
        a(f'v_mfma_f32_32x32x16_bf16 {vr(SX, 16)}, {vr(KX + 4 * i, 4)}, {vr(QOP + 4 * i, 4)}, {vr(BIAS, 16) if i == 0 else vr(SX, 16)}')
    for i in range(8):
        a(f's_waitcnt vmcnt({12 - i})')
        a(f'v_mfma_f32_32x32x16_bf16 {vr(SM, 16)}, {vr(KM + 4 * i, 4)}, {vr(QOP + 4 * i, 4)}, {"0" if i == 0 else vr(SM, 16)}')
    a(f'v_max3_f32 {vMX}, v{SX}, v{SX + 1}, v{SX + 2}')
    a(f'v_max_f32 {vT}, v{SX + 3}, v{SX + 4}')
    i = 5; tog = 0
    while i < 20:
        acc = vMX if tog == 0 else vT
        if i + 1 < 20: a(f'v_max3_f32 {acc}, {acc}, v{SX + i}, v{SX + i + 1}'); i += 2
        else: a(f'v_max_f32 {acc}, {acc}, v{SX + i}'); i += 1
        tog ^= 1
    a(f'v_max_f32 {vMX}, {vMX}, {vT}')
    a(f'v_mov_b32 {vT}, {vMX}')
    a(f'v_permlane32_swap_b32 {vMX}, {vT}')
    a(f'v_max_f32 {vMX}, {vMX}, {vT}')
    a(f'v_mul_f32 {vMX}, {sC}, {vMX}')
    for r in range(20): a(f'v_fma_f32 v{SX + r}, v{SX + r}, {sC}, -{vMX}')
    for r in range(20): a(f'v_exp_f32 v{SX + r}, v{SX + r}')
    for r in range(10): a(f'v_cvt_pk_bf16_f32 v{PKD + r}, v{SX + 2 * r}, v{SX + 2 * r + 1}')
    a(f'v_mov_b32 v{PKD + 10}, v{PKD + 8}'); a(f'v_mov_b32 v{PKD + 11}, v{PKD + 9}')
    OA = QA_
    a('s_waitcnt vmcnt(0)')
    for i in range(3):
        a(f'v_mfma_f32_32x32x16_bf16 {vr(OA, 16)}, {vr(VF + 4 * i, 4)}, {vr(PKD + 4 * i, 4)}, {"0" if i == 0 else vr(OA, 16)}')
    a(f'v_add_f32 {vT}, v{SX}, v{SX + 1}'); a(f'v_add_f32 {vT2}, v{SX + 2}, v{SX + 3}')
    for r in range(4, 20, 2):
        a(f'v_add_f32 {vT}, {vT}, v{SX + r}'); a(f'v_add_f32 {vT2}, {vT2}, v{SX + r + 1}')
    a(f'v_add_f32 {vT}, {vT}, {vT2}')
    a(f'v_mov_b32 {vT2}, {vT}')
    a(f'v_permlane32_swap_b32 {vT}, {vT2}')
    a(f'v_add_f32 {vT}, {vT}, {vT2}')
    a(f'v_rcp_f32 {vT}, {vT}')
    a(f'v_mul_f32 {vT}, {vT}, {vG}')
    for r in range(16): a(f'v_mul_f32 v{OA + r}, v{OA + r}, {vT}')
    for i in range(8): a(f'v_cvt_pk_bf16_f32 v{PKD + i}, v{OA + 2 * i}, v{OA + 2 * i + 1}')
    a(f'ds_write_b128 {vQW}, {vr(PKD, 4)} offset:8192')
    a(f'ds_write_b128 {vQW}, {vr(PKD + 4, 4)} offset:9216')
    a('s_waitcnt lgkmcnt(0)')
    a('s_barrier')
    lq = LQ(a)
    for i in range(8): lq.issue(f'ds_read_b128 {vr(QOP + 4 * i, 4)}, {vQR} offset:{8192 + i * 1024}', ('o', i))
    a(f's_lshl_b32 {sPW}, {sSEG}, 20'); a(f's_lshl_b32 s3, {sWAVE}, 18'); a(f's_add_u32 {sPW}, {sPW}, s3')
    a(f's_lshl_b32 s3, {sHEAD}, 10'); a(f's_add_u32 {sPW}, {sPW}, s3'); a(f's_add_u32 {sPW}, {sPW}, {WS_PART}')
    def tile_out(t):
        b = OUT + 16 * t
        for i in range(8): a(f'v_cvt_pk_bf16_f32 v{b + i}, v{b + 2 * i}, v{b + 2 * i + 1}')
        for jj in range(2):
            a(f's_add_u32 {sT0}, {sPW}, {(2 * t + jj) * 32768}')
            a(f'buffer_store_dwordx4 {vr(b + 4 * jj, 4)}, {vL16}, {SRD(S_WS)}, {sT0} offen sc1')
    for t in range(4):
        for n, ks in enumerate([8] + list(range(8))):
            k, b = WO(ks, t)
            if ks < 8: lq.wait(('o', ks))
            bop = vr(VF + 12, 4) if ks == 8 else vr(QOP + 4 * ks, 4)
            d = vr(OUT + 16 * t, 16)
            a(f'v_mfma_f32_32x32x16_bf16 {d}, {vr(b, 4, k)}, {bop}, {"0" if n == 0 else d}')
            if n == 2 and t > 0: tile_out(t - 1)
    tile_out(3)
    a(f's_mov_b32 {sPSEG}, {sSEG}')
    a(f's_add_u32 {sI}, {sI}, 1')
    a(f's_add_u32 {sSEG}, {sSEG}, {NG}')
    a(f's_add_u32 {sBUF}, {sBUF}, 32768')
    a(f's_and_b32 {sBUF}, {sBUF}, 0x1ffff')
    a(f's_cmp_lt_u32 {sI}, {sN}')
    a('s_cbranch_scc1 L_QA_LOOP')
    a('s_waitcnt vmcnt(0)')
    a('s_barrier')
    qflag()
    reduce_prev()
    G.stamp(a, cfg, 2, vT, vT2)
    a('s_endpgm')
```

```python
import sys
sys.path.insert(0, 'dev')
from asmlib import *
from layout import *

NAME = 'gated_mix__memory_aug_recurrent_mem_tr__sliding_block__prompt'
HEADER = open(f'cdna_kernels/{NAME}.s.ref').read().split('; Override launch geometry')[0]

S_X, S_MEM0, S_WQ, S_WK, S_WV, S_WO, S_BQKV, S_BWO, S_GATE, S_OUT, S_DBG, S_WS = [4 + 4 * i for i in range(12)]
SRD = lambda b: f's[{b}:{b+3}]'
sWAVE, sHEAD, sGRP, sXCC, sSPIN = 's52', 's53', 's54', 's55', 's56'
vLANE = 'v0'
SPIN_LIMIT = 400000

class Cfg:
    roles = ['R', 'KV', 'KV', 'QA', 'QA', 'B', 'B', 'IDLE']
    ts = False
    enable = ('R', 'KV', 'QA', 'B')
    force_slow = False

def spin_check(a, code):
    a(f's_add_u32 {sSPIN}, {sSPIN}, 1')
    a(f's_cmp_gt_u32 {sSPIN}, {SPIN_LIMIT}')
    a(f's_cbranch_scc1 L_TIMEOUT_{code}')

def emit_timeouts(a, codes):
    for c in codes:
        a(f'L_TIMEOUT_{c}:')
        a(f's_mov_b64 exec, 1')
        a(f'v_mov_b32 v1, {(DBG_ERR + c) * 4}')
        a(f'v_mov_b32 v2, 1')
        a(f'buffer_atomic_add v2, v1, {SRD(S_DBG)}, 0 offen')
        a('s_endpgm')

def wait_ge(a, srd, vaddr, soff, thresh, vtmp, stmp, code, sleep=2):
    L = a.label('L_poll'); D = a.label('L_polled')
    a(f's_mov_b32 {sSPIN}, 0')
    a(f'{L}:')
    a(f'buffer_load_dword {vtmp}, {vaddr}, {srd}, {soff} offen sc1')
    a('s_waitcnt vmcnt(0)')
    a(f'v_readfirstlane_b32 {stmp}, {vtmp}')
    a(f's_cmp_ge_u32 {stmp}, {thresh}')
    a(f's_cbranch_scc1 {D}')
    if sleep: a(f's_sleep {sleep}')
    spin_check(a, code)
    a(f's_branch {L}')
    a(f'{D}:')

def stamp(a, cfg, idx, vt0, vt1, s0=98):
    if not cfg.ts: return
    a(f's_memrealtime s[{s0}:{s0+1}]')
    a('s_waitcnt lgkmcnt(0)')
    a(f'v_mov_b32 {vt0}, s{s0}')
    if isinstance(idx, int):
        a(f'v_mov_b32 {vt1}, {idx * 4}')
    else:
        a(f'v_mov_b32 {vt1}, {idx}')
        a(f'v_lshlrev_b32 {vt1}, 2, {vt1}')
    a(f'buffer_store_dword {vt0}, {vt1}, {SRD(S_WS)}, s57 offen')

def prologue(a, cfg):
    a(f's_cmp_ge_u32 s2, 256')
    a(f's_cbranch_scc1 L_END')
    slots = [(S_X, 0, 2097152), (S_MEM0, 8, 8192), (S_WQ, 16, 4194304), (S_WK, 24, 4194304), (S_WV, 32, 4194304), (S_WO, 40, 4194304),
             (S_BQKV, 64, 1572864), (S_BWO, 72, 524288), (S_GATE, 80, 1024), (S_OUT, 88, 2097152), (S_DBG, 96, 256), (S_WS, 104, WS_BYTES)]
    for b, off, _ in slots:
        a(f's_load_dwordx2 s[{b}:{b+1}], s[0:1], {off}')
    a(f's_getreg_b32 {sXCC}, hwreg(HW_REG_XCC_ID, 0, 4)')
    a(f's_and_b32 {sXCC}, {sXCC}, 7')
    a(f'v_lshrrev_b32 v1, 6, v0')
    a(f'v_and_b32 v0, 63, v0')
    a(f'v_readfirstlane_b32 {sWAVE}, v1')
    for b, _, n in slots:
        a(f's_mov_b32 s{b+2}, {n}')
        a(f's_mov_b32 s{b+3}, 0x00020000')
    a('s_waitcnt lgkmcnt(0)')
    a(f's_cmp_lg_u32 {sWAVE}, 0')
    a(f's_cbranch_scc1 L_ELECTED')
    a(f's_mov_b64 exec, 1')
    a(f's_lshl_b32 s3, {sXCC}, 2')
    a(f'v_mov_b32 v1, s3')
    a(f'v_mov_b32 v2, 1')
    a(f'buffer_atomic_add v2, v1, {SRD(S_DBG)}, 0 offen sc0')
    a(f's_mov_b64 exec, 0xffffffff')
    a(f's_lshl_b32 s3, s2, 7')
    a(f'v_lshlrev_b32 v3, 2, v0')
    a(f'v_mov_b32 v4, 0')
    a(f'buffer_store_dword v4, v3, {SRD(S_WS)}, s3 offen sc1')
    a(f's_mov_b64 exec, 1')
    a('s_waitcnt vmcnt(1)')
    a(f'v_readfirstlane_b32 s58, v2')
    a(f's_lshl_b32 s59, {sXCC}, 5')
    a(f's_add_u32 s59, s59, s58')
    a(f's_cmp_lt_u32 s58, 32')
    a(f's_cbranch_scc1 L_SLOT_OK')
    a(f'v_mov_b32 v1, {DBG_OVER * 4}')
    a(f'v_mov_b32 v2, 1')
    a(f'buffer_atomic_add v2, v1, {SRD(S_DBG)}, 0 offen sc0')
    a('s_waitcnt vmcnt(0)')
    a(f'v_readfirstlane_b32 s58, v2')
    a(f's_mov_b32 {sSPIN}, 0')
    a('L_OV_POLL:')
    a(f's_mov_b64 exec, 0xff')
    a(f'buffer_load_dword v5, v3, {SRD(S_DBG)}, 0 offen sc1')
    a('s_waitcnt vmcnt(0)')
    a(f's_mov_b32 s60, 0')
    for x in range(8):
        a(f'v_readlane_b32 s{64+x}, v5, {x}')
    for x in range(8):
        a(f's_add_u32 s60, s60, s{64+x}')
    a(f's_cmp_eq_u32 s60, 256')
    a(f's_cbranch_scc1 L_OV_ALL')
    a('s_sleep 4')
    spin_check(a, 0)
    a('s_branch L_OV_POLL')
    a('L_OV_ALL:')
    a(f's_mov_b32 s59, 255')
    for x in range(8):
        a(f's_min_u32 s61, s{64+x}, 32')
        a(f's_sub_u32 s62, 32, s61')
        a(f's_cmp_lt_u32 s58, s62')
        a(f's_cbranch_scc0 L_OV_N{x}')
        a(f's_add_u32 s59, s61, s58')
        a(f's_add_u32 s59, s59, {x * 32}')
        a(f's_mov_b32 s58, 0x40000000')
        a(f'L_OV_N{x}:')
        a(f's_sub_u32 s58, s58, s62')
    a(f's_mov_b64 exec, 1')
    a('L_SLOT_OK:')
    a(f'v_mov_b32 v1, 0')
    a(f'v_mov_b32 v2, s59')
    a(f'ds_write_b32 v1, v2')
    a('s_waitcnt vmcnt(0) lgkmcnt(0)')
    a(f'v_mov_b32 v1, {DBG_INIT * 4}')
    a(f'v_mov_b32 v2, 1')
    a(f'buffer_atomic_add v2, v1, {SRD(S_DBG)}, 0 offen')
    a(f's_mov_b64 exec, -1')
    a('L_ELECTED:')
    a('s_barrier')
    a(f'v_mov_b32 v1, 0')
    a(f'ds_read_b32 v2, v1')
    a('s_waitcnt lgkmcnt(0)')
    a(f'v_readfirstlane_b32 s59, v2')
    a('s_barrier')
    a(f's_and_b32 {sHEAD}, s59, 31')
    a(f's_lshr_b32 s58, s59, 5')
    if cfg.ts:
        a(f's_lshl_b32 s57, s59, 12')
        a(f's_lshl_b32 s3, {sWAVE}, 10')
        a(f's_add_u32 s57, s57, s3')
        a(f's_add_u32 s57, s57, {WS_TS}')
        stamp(a, cfg, 0, 'v1', 'v2')
    cnt = {}
    for x, role in enumerate(cfg.roles):
        g = cnt.get(role, 0); cnt[role] = g + 1
        if role == 'IDLE' or role not in cfg.enable: continue
        a(f's_mov_b32 {sGRP}, {g}')
        a(f's_cmp_eq_u32 s58, {x}')
        a(f's_cbranch_scc1 L_JMP_{role}')
    a('L_END:')
    a('s_endpgm')
    for role in cfg.enable:
        if role in cfg.roles:
            a(f'L_JMP_{role}:')
            a(f's_branch L_ROLE_{role}')

def wait_init(a, vtmp, vaddr, code=1):
    a(f'v_mov_b32 {vaddr}, {DBG_INIT * 4}')
    wait_ge(a, SRD(S_DBG), vaddr, 0, 256, vtmp, 's3', code)

def load_weights(a, blocks, ring_base_s, nslot, s_m0tmp, s_offtmp, pre_issue=None):
    n = len(blocks)
    def issue(i):
        b = blocks[i]; slot = i % nslot
        for j, (sb, c) in enumerate(b['soffs']):
            a(f's_add_u32 m0, {ring_base_s}, {slot * 4096 + j * 1024}')
            a(f's_add_u32 {s_offtmp}, {sb}, {c}')
            a(f'buffer_load_dwordx4 {b["voff"]}, {b["srd"]}, {s_offtmp} offen lds')
    for i in range(min(nslot, n)): issue(i)
    for i in range(n):
        b = blocks[i]; slot = i % nslot
        outstanding_after = 4 * (min(i + nslot, n) - (i + 1))
        a(f's_waitcnt vmcnt({min(outstanding_after, 63)})')
        for (dest, vaddr, off) in b['reads']:
            a(f'ds_read_b64_tr_b16 {dest}, {vaddr} offset:{slot * 4096 + off}')
        a('s_waitcnt lgkmcnt(0)')
        if b.get('post'): b['post'](slot)
        if i + nslot < n: issue(i + nslot)

def role_kv(a, cfg):
    NG = cfg.roles.count('KV')
    a('L_ROLE_KV:')
    sRING, sT0, sT1, sCOL, sI, sN, sSEG, sBUF, sOUT, sFL, sXO = 's60', 's61', 's62', 's63', 's64', 's65', 's66', 's67', 's68', 's69', 's70'
    vWOFF, vTR, vT, vL16 = 'v1', 'v2', 'v3', 'v4'
    vXS = 8
    vRA0 = 16
    vRA = 24
    vXF = 32
    NXF = 8
    vACC = [64, 96]
    vPK = 128
    NSLOT = 6; RING0 = 65536
    a(f's_sub_u32 {sN}, {64 + NG - 1}, {sGRP}')
    if NG == 2: a(f's_lshr_b32 {sN}, {sN}, 1')
    elif NG == 3:
        a(f's_mul_i32 {sN}, {sN}, 43'); a(f's_lshr_b32 {sN}, {sN}, 7')
    elif NG != 1: raise ValueError
    a(f'v_lshlrev_b32 {vL16}, 4, {vLANE}')
    a(f's_lshl_b32 {sT0}, {sWAVE}, 3')
    for j in range(8):
        a(f's_add_u32 {sT1}, {sT0}, {j}')
        a(f's_and_b32 s3, {sT1}, 15')
        a(f's_lshl_b32 s3, s3, 4')
        a(f'v_xor_b32 v{vXS + j}, s3, {vL16}')
        a(f's_lshl_b32 s3, {sT1}, 10')
        a(f'v_add_u32 v{vXS + j}, s3, v{vXS + j}')
    def issue_x(seg_s, buf_expr_s):
        a(f's_lshl_b32 {sXO}, {seg_s}, 15')
        a(f's_lshl_b32 s3, {sWAVE}, 13')
        a(f's_add_u32 s3, s3, {buf_expr_s}')
        for j in range(8):
            a(f's_add_u32 m0, s3, {j * 1024}')
            a(f'buffer_load_dwordx4 v{vXS + j}, {SRD(S_X)}, {sXO} offen lds')
    a(f's_mov_b32 {sSEG}, {sGRP}')
    issue_x(sSEG, 0)
    a(f's_add_u32 {sT0}, {sGRP}, {NG}')
    issue_x(sT0, 32768)
    a.lane_affine(vT, lambda l: (l >> 5) * 16, vLANE, 'v5')
    a.lane_affine('v6', lambda l: (l & 15) * 16, vLANE, 'v5')
    a.lane_affine('v7', lambda l: (l & 31) * 1024, vLANE, 'v5')
    for j in range(8):
        a(f'v_add_u32 v5, {32 * j}, {vT}')
        a(f'v_xor_b32 v5, v5, v6')
        a(f'v_add_u32 v{vRA0 + j}, v5, v7')
    a(f's_mul_i32 {sRING}, {sWAVE}, {NSLOT * 4096}')
    a(f's_add_u32 {sRING}, {sRING}, {RING0}')
    a.lane_affine(vWOFF, lambda l: (l >> 2) * 8192 + (l & 3) * 16, vLANE, 'v5')
    a.lane_affine(vTR, lambda l: (8 * (l >> 5) + ((l & 15) >> 2)) * 64 + (16 * ((l >> 4) & 1) + 4 * (l & 3)) * 2, vLANE, 'v5')
    a(f'v_add_u32 {vTR}, {sRING}, {vTR}')
    a(f's_lshl_b32 {sCOL}, {sHEAD}, 8')
    a(f's_lshl_b32 s3, {sWAVE}, 6')
    a(f's_add_u32 {sCOL}, {sCOL}, s3')
    blocks = []
    for blk in range(8):
        for mi, srd in enumerate((S_WK, S_WV)):
            reads = []
            for k4 in range(4):
                ks = blk * 4 + k4
                base = mi * 128 + ks * 4
                reads.append((ar(base, 2), vTR, k4 * 1024))
                reads.append((ar(base + 2, 2), vTR, k4 * 1024 + 256))
            blocks.append(dict(srd=SRD(srd), voff=vWOFF, soffs=[(sCOL, (64 * blk + 16 * i) * 8192) for i in range(4)], reads=reads))
    load_weights(a, blocks, sRING, NSLOT, None, sT1)
    stamp(a, cfg, 1, 'v5', 'v6')
    wait_init(a, 'v5', 'v6')
    a('s_barrier')
    a(f's_add_u32 {sT0}, {sGRP}, {2 * NG}')
    issue_x(sT0, 65536)
    a(f's_mul_i32 {sFL}, {sGRP}, {32 * 128}')
    a(f's_lshl_b32 s3, {sHEAD}, 7')
    a(f's_add_u32 {sFL}, {sFL}, s3')
    a(f's_add_u32 {sFL}, {sFL}, {FL_KV(0, 0)}')
    a(f's_mov_b32 {sI}, 0')
    a(f's_mov_b32 {sBUF}, 0')
    a('v_mov_b32 v7, 0')
    a('L_KV_LOOP:')
    a('s_waitcnt vmcnt(12)')
    a('s_barrier')
    a(f's_cmp_lt_u32 {sI}, 2')
    a(f's_cbranch_scc1 L_KV_NOFLAG')
    a(f's_cmp_lg_u32 {sWAVE}, 0')
    a(f's_cbranch_scc1 L_KV_NOFLAG')
    a(f's_sub_u32 s3, {sI}, 1')
    a(f'v_mov_b32 v5, s3')
    a(f's_mov_b64 exec, 1')
    a(f'buffer_store_dword v5, v7, {SRD(S_WS)}, {sFL} offen sc1')
    a(f's_mov_b64 exec, -1')
    a('L_KV_NOFLAG:')
    for j in range(8):
        a(f'v_add_u32 v{vRA + j}, {sBUF}, v{vRA0 + j}')
    PRE = NXF - 1
    def rd(ks):
        a(f'ds_read_b128 {vr(vXF + 4 * (ks % NXF), 4)}, v{vRA + (ks & 7)} offset:{(ks >> 3) * 256}')
    for ks in range(PRE): rd(ks)
    a(f's_add_u32 {sT0}, {sSEG}, {3 * NG}')
    a(f's_add_u32 {sT1}, {sBUF}, {3 * 32768}')
    a(f's_and_b32 {sT1}, {sT1}, 0x1ffff')
    issue_x(sT0, sT1)
    K, V = vACC[0], vACC[0] + 16
    for ks in range(32):
        n_out = min(ks + PRE, 32) - (ks + 1)
        a(f's_waitcnt lgkmcnt({n_out})')
        xf = vr(vXF + 4 * (ks % NXF), 4)
        c0 = '0' if ks == 0 else None
        a(f'v_mfma_f32_32x32x16_bf16 {vr(K, 16)}, {ar(ks * 4, 4)}, {xf}, {c0 or vr(K, 16)}')
        a(f'v_mfma_f32_32x32x16_bf16 {vr(V, 16)}, {xf}, {ar(128 + ks * 4, 4)}, {c0 or vr(V, 16)}')
        if ks + PRE < 32: rd(ks + PRE)
    a(f's_lshl_b32 {sOUT}, {sSEG}, 5')
    a(f's_add_u32 {sOUT}, {sOUT}, {sHEAD}')
    a(f's_lshl_b32 {sOUT}, {sOUT}, 13')
    a(f's_lshl_b32 s3, {sWAVE}, 11')
    a(f's_add_u32 {sOUT}, {sOUT}, s3')
    a(f's_add_u32 {sT0}, {sOUT}, {WS_KX}')
    a(f's_add_u32 {sT1}, {sOUT}, {WS_VX}')
    for j in range(16):
        a(f'v_cvt_pk_bf16_f32 v{vPK + j}, v{K + 2 * j}, v{K + 2 * j + 1}')
    for q in range(4):
        a(f'buffer_store_dwordx4 {vr(vPK + 4 * q, 4)}, {vL16}, {SRD(S_WS)}, {sT0 if q < 2 else sT1} offen offset:{(q & 1) * 1024} sc1')
    a(f's_add_u32 {sI}, {sI}, 1')
    a(f's_add_u32 {sSEG}, {sSEG}, {NG}')
    a(f's_add_u32 {sBUF}, {sBUF}, 32768')
    a(f's_and_b32 {sBUF}, {sBUF}, 0x1ffff')
    a(f's_cmp_lt_u32 {sI}, {sN}')
    a('s_cbranch_scc1 L_KV_LOOP')
    a('s_waitcnt vmcnt(0)')
    a('s_barrier')
    a(f'v_mov_b32 v5, {sN}')
    a(f's_mov_b64 exec, 1')
    a(f'buffer_store_dword v5, v7, {SRD(S_WS)}, {sFL} offen sc1')
    a(f's_mov_b64 exec, -1')
    stamp(a, cfg, 2, 'v5', 'v6')
    a('s_endpgm')

def build(cfg):
    a = Asm()
    prologue(a, cfg)
    import roles2
    if 'KV' in cfg.enable: role_kv(a, cfg)
    if 'B' in cfg.enable: roles2.role_b(a, cfg)
    if 'R' in cfg.enable: roles2.role_r(a, cfg)
    if 'QA' in cfg.enable: roles2.role_qa(a, cfg)
    emit_timeouts(a, range(12))
    body = a.render()
    txt = HEADER + f"""; Override launch geometry by editing the next line (default: block=256,
; grid=ceil(out_elems/256), lds=0). Harness parses it; keep it on one line.
; @launch grid=(256,1,1) block=(256,1,1) lds=163840
.amdgcn_target "amdgcn-amd-amdhsa--gfx950"
.text
.globl {NAME}_kernel
.p2align 8
.type {NAME}_kernel,@function
{NAME}_kernel:
{body}
.section .rodata,"a"
.p2align 6
.amdhsa_kernel {NAME}_kernel
  .amdhsa_next_free_vgpr 512
  .amdhsa_next_free_sgpr 102
  .amdhsa_accum_offset 256
  .amdhsa_group_segment_fixed_size 0
  .amdhsa_kernarg_size 112
  .amdhsa_user_sgpr_count 2
  .amdhsa_user_sgpr_kernarg_segment_ptr 1
  .amdhsa_system_sgpr_workgroup_id_x 1
.end_amdhsa_kernel
"""
    return txt

if __name__ == '__main__':
    import argparse
    ap = argparse.ArgumentParser()
    ap.add_argument('-o', default='k.s'); ap.add_argument('--enable', default='R,KV,QA,B'); ap.add_argument('--ts', action='store_true')
    ap.add_argument('--slow', action='store_true'); ap.add_argument('--roles', default='')
    args = ap.parse_args()
    cfg = Cfg(); cfg.enable = tuple(args.enable.split(',')); cfg.ts = args.ts; cfg.force_slow = args.slow
    if args.roles: cfg.roles = args.roles.split(',')
    open(args.o, 'w').write(build(cfg))
```
